```python
import torch

def _softmax(x, axis=-1):
    return torch.softmax(x, dim=axis)
def _gelu(x):
    return torch.nn.functional.gelu(x, approximate="tanh")
def _silu(x):
    return torch.nn.functional.silu(x)
def _sigmoid(x):
    return torch.sigmoid(x)
def _layernorm(x, axis=-1, eps=1e-5):
    m = x.mean(dim=axis, keepdim=True)
    v = x.var(dim=axis, keepdim=True, unbiased=False)
    return (x - m) / torch.sqrt(v + eps)
def _scatter_add(tgt, idx, src, axis=0):
    return tgt.clone().index_add_(axis, idx, src)
def _segment_sum(src, seg, n):
    out = torch.zeros((n,) + src.shape[1:], dtype=src.dtype)
    return out.index_add_(0, seg, src)
def _pad(x, pw):
    flat = tuple(v for pair in reversed(pw) for v in pair)
    return torch.nn.functional.pad(x, flat)

kernel_name = 'gated_mix__ssm_conv_s4d__grouped_kv_mqa__prompt'

def setup_inputs():

    _w = (lambda a: (lambda t: t.to(torch.bfloat16) if t.is_floating_point() else t)(torch.as_tensor(a)))
    def _A_setup():
        Bsz, L, D, N = 1, 2048, 576, 128
        return {
            "u": _w((lambda *s: torch.randn(*s, dtype=torch.bfloat16) * 0.05)(Bsz, L, D)),
            "log_A_real": _w((lambda *s: torch.randn(*s, dtype=torch.bfloat16) * 6.4)(D, N) * 0.5),
            "A_imag": _w((lambda *s: torch.randn(*s, dtype=torch.bfloat16) * 0.05)(D, N) * 3.14),
            "C_real": _w((lambda *s: torch.randn(*s, dtype=torch.bfloat16) * 0.05)(D, N) / N ** 0.5),
            "C_imag": _w((lambda *s: torch.randn(*s, dtype=torch.bfloat16) * 0.05)(D, N) / N ** 0.5),
            "log_dt": _w((lambda *s: torch.randn(*s, dtype=torch.bfloat16) * 0.05)(D) * 0.5 - 4.0),
            "D_skip": _w((lambda *s: torch.randn(*s, dtype=torch.bfloat16) * 0.05)(D)),
        }
    _A_in = _A_setup()

    def _B_setup():
        B, S, D, H = 1, 2048, 576, 32
        Dh = D // H
        return {
            "x": _w((lambda *s: torch.randn(*s, dtype=torch.bfloat16) * 0.05)(B, S, D)),
            "wq": _w((lambda *s: torch.randn(*s, dtype=torch.bfloat16) * 0.8)(D, H * Dh)),
            "wk": _w((lambda *s: torch.randn(*s, dtype=torch.bfloat16) * 0.8)(D, Dh)),
            "wv": _w((lambda *s: torch.randn(*s, dtype=torch.bfloat16) * 0.05)(D, Dh)),
            "wo": _w((lambda *s: torch.randn(*s, dtype=torch.bfloat16) * 0.05)(H * Dh, D)),
        }
    _B_in = _B_setup()

    return {
        "A_u": _A_in["u"],
        "A_log_A_real": _A_in["log_A_real"],
        "A_A_imag": _A_in["A_imag"],
        "A_C_real": _A_in["C_real"],
        "A_C_imag": _A_in["C_imag"],
        "A_log_dt": _A_in["log_dt"],
        "A_D_skip": _A_in["D_skip"],
        "B_x": _B_in["x"],
        "B_wq": _B_in["wq"],
        "B_wk": _B_in["wk"],
        "B_wv": _B_in["wv"],
        "B_wo": _B_in["wo"],
        "gate_w": _w((lambda *s: torch.randn(*s, dtype=torch.bfloat16) * 0.05)(576) * 16.0),
    }

def reference(A_u, A_log_A_real, A_A_imag, A_C_real, A_C_imag, A_log_dt, A_D_skip, B_x, B_wq, B_wk, B_wv, B_wo, gate_w):
    def _A_ref(u, log_A_real, A_imag, C_real, C_imag, log_dt, D_skip):
        L = u.shape[1]
        dt = torch.exp(log_dt)
        A = -torch.exp(log_A_real) + 1j * A_imag
        C = (C_real + 1j * C_imag) * dt[:, None]
        pos = (lambda x, dt: x.to(dt))(torch.arange(L), log_dt.dtype)
        P = torch.exp((A * dt[:, None])[:, :, None] * pos[None, None, :])
        K = 2.0 * torch.einsum("dn,dnl->dl", C, P).real
        L2 = 2 * L
        u_t = (lambda x, *d: x.permute(*d))(u, 0, 2, 1)
        Kf = (lambda x, *a, **k: torch.fft.rfft(x.float(), *a, **k))(K, L2)
        Uf = (lambda x, *a, **k: torch.fft.rfft(x.float(), *a, **k))(u_t, L2)
        y = (lambda x, *a, **k: torch.fft.irfft(x, *a, **k).to(torch.bfloat16))(Uf * Kf[None, :, :], L2)[:, :, :L]
        y = (lambda x, *d: x.permute(*d))(y, 0, 2, 1)
        return y + u * D_skip[None, None, :]

    def _B_ref(x, wq, wk, wv, wo):
        B, S, D = x.shape
        H = 32
        Dh = D // H
        q = (lambda x, *d: x.permute(*d))((x @ wq).reshape(B, S, H, Dh), 0, 2, 1, 3)
        k = x @ wk
        v = x @ wv
        scores = torch.einsum("bhqd,bkd->bhqk", q, k) * (Dh ** -0.5)
        p = _softmax(scores, axis=-1)
        o = torch.einsum("bhqk,bkd->bhqd", p, v)
        return (lambda x, *d: x.permute(*d))(o, 0, 2, 1, 3).reshape(B, S, H * Dh) @ wo

    x = A_u
    g = _sigmoid((x * gate_w).sum(-1, keepdims=True))
    a = _A_ref(x, A_log_A_real, A_A_imag, A_C_real, A_C_imag, A_log_dt, A_D_skip)
    b = _B_ref(x, B_wq, B_wk, B_wv, B_wo)
    return g * a + (1 - g) * b
```

```python
import math, sys, struct

WS_Q   = 0
WS_O   = 2359296
WS_KVF = 4718592
PH_BYTES = 81920
KF1_OFF = 0
KF2_OFF = 32768
VF_OFF  = 40960
WS_G   = 4882432
WS_KT  = 4890624
KT_ROW = 4224
WS_UT  = 7323648
WS_YT  = 9682944

LOG2E = 1.4426950408889634
QSCALE = LOG2E / math.sqrt(18.0)

def f32bits(x):
    return struct.unpack('<I', struct.pack('<f', x))[0]

class Asm:
    def __init__(self):
        self.lines = []
    def __call__(self, s):
        for ln in s.strip('\n').split('\n'):
            self.lines.append('    ' + ln.strip())
    def label(self, name):
        self.lines.append(name + ':')
    def raw(self, s):
        self.lines.append(s)
    def text(self):
        return '\n'.join(self.lines) + '\n'

def vr(a, n=1):
    return f'v{a}' if n == 1 else f'v[{a}:{a+n-1}]'
def sr(a, n=1):
    return f's{a}' if n == 1 else f's[{a}:{a+n-1}]'

def kernel_header(a, name):
    a.raw('.text')
    a.raw(f'.globl {name}')
    a.raw('.p2align 8')
    a.raw(f'.type {name},@function')
    a.label(name)

def kernel_desc(name, vgpr, sgpr=96):
    acc = (vgpr + 3) // 4 * 4
    return f'''.section .rodata,"a"
.p2align 6
.amdhsa_kernel {name}
  .amdhsa_next_free_vgpr {vgpr}
  .amdhsa_next_free_sgpr {sgpr}
  .amdhsa_accum_offset {acc}
  .amdhsa_group_segment_fixed_size 0
  .amdhsa_kernarg_size 128
  .amdhsa_user_sgpr_count 2
  .amdhsa_user_sgpr_kernarg_segment_ptr 1
  .amdhsa_system_sgpr_workgroup_id_x 1
.end_amdhsa_kernel
'''

A_U, A_LOGA, A_AIM, A_CRE, A_CIM, A_LOGDT, A_DSKIP, A_BX, A_WQ, A_WK, A_WV, A_WO, A_GW, A_OUT, A_DBG, A_WS = range(16)

def load_ptr(a, sdst, slot):
    a(f's_load_dwordx2 {sr(sdst,2)}, s[0:1], {slot*8}')

def ws_ptr(a, sdst, sws, off):
    a(f's_add_u32 {sr(sdst)}, {sr(sws)}, {off}')
    a(f's_addc_u32 {sr(sdst+1)}, {sr(sws+1)}, 0')

def bf16r(a, v, tmp):
    a(f'v_bfe_u32 {vr(tmp)}, {vr(v)}, 16, 1')
    a(f'v_add3_u32 {vr(v)}, {vr(v)}, {vr(tmp)}, s90')
    a(f'v_and_b32 {vr(v)}, 0xffff0000, {vr(v)}')

def div_const(a, sq, srem, ssrc, c, stmp):
    magic = (2**32 + c - 1)//c
    a(f's_mov_b32 {sr(stmp)}, {magic}')
    a(f's_mul_hi_u32 {sr(sq)}, {sr(ssrc)}, {sr(stmp)}')
    a(f's_mul_i32 {sr(stmp)}, {sr(sq)}, {c}')
    a(f's_sub_u32 {sr(srem)}, {sr(ssrc)}, {sr(stmp)}')

G_L, G_H, G_I, G_W, G_AOFF, G_BOFF, G_LDS, G_TR, G_T0, G_T1, G_T2, G_T3 = range(1, 13)
G_BF = 16
G_ACC = 24
G_ABUF = 40

def gemm_lane_setup(a):
    a(f'v_and_b32 {vr(G_L)}, 63, v0')
    a(f'v_lshrrev_b32 {vr(G_W)}, 6, v0')
    a(f'v_lshrrev_b32 {vr(G_H)}, 5, {vr(G_L)}')
    a(f'v_and_b32 {vr(G_I)}, 31, {vr(G_L)}')
    a('s_movk_i32 s91, 1152')

def gemm_a_setup(a, s_m0):
    a(f'v_lshl_add_u32 {vr(G_AOFF)}, {vr(G_W)}, 5, {vr(G_I)}')
    a(f'v_add_u32 {vr(G_AOFF)}, {sr(s_m0)}, {vr(G_AOFF)}')
    a(f'v_mul_lo_u32 {vr(G_AOFF)}, {vr(G_AOFF)}, s91')
    a(f'v_lshl_add_u32 {vr(G_AOFF)}, {vr(G_H)}, 6, {vr(G_AOFF)}')

def a_loads(a, sA, batch):
    base = G_ABUF + (batch % 2) * 32
    n = 0
    for g in range(2):
        gg = batch*2 + g
        if gg >= 9: break
        for s in range(4):
            a(f'global_load_dwordx4 {vr(base + (g*4+s)*4, 4)}, {vr(G_AOFF)}, {sr(sA,2)} offset:{gg*128 + s*16}')
            n += 1
    return n

def gemm_stage_b(a, sB, s_n0, n_after):
    BR = G_ABUF + 32
    a(f'v_lshrrev_b32 {vr(G_BOFF)}, 2, v0')
    a(f'v_mul_lo_u32 {vr(G_BOFF)}, {vr(G_BOFF)}, s91')
    a(f'v_and_b32 {vr(G_T0)}, 3, v0')
    a(f'v_lshl_add_u32 {vr(G_BOFF)}, {vr(G_T0)}, 4, {vr(G_BOFF)}')
    a(f's_lshl_b32 s92, {sr(s_n0)}, 1')
    a(f'v_add_u32 {vr(G_BOFF)}, s92, {vr(G_BOFF)}')
    a(f'v_lshlrev_b32 {vr(G_LDS)}, 4, v0')
    for j in range(9):
        a(f'global_load_dwordx4 {vr(BR+4*j,4)}, {vr(G_BOFF)}, {sr(sB,2)}')
        if j < 8:
            a(f'v_add_u32 {vr(G_BOFF)}, 0x12000, {vr(G_BOFF)}')
    return BR

def gemm_stage_b_write(a, BR, n_after):
    for j in range(9):
        a(f's_waitcnt vmcnt({n_after + 8 - j})')
        a(f'ds_write_b128 {vr(G_LDS)}, {vr(BR+4*j,4)} offset:{j*4096}')

def gemm_tr_setup(a):
    a(f'v_and_b32 {vr(G_T0)}, 15, {vr(G_L)}')
    a(f'v_lshrrev_b32 {vr(G_T1)}, 2, {vr(G_T0)}')
    a(f'v_lshl_add_u32 {vr(G_T1)}, {vr(G_H)}, 5, {vr(G_T1)}')
    a(f'v_lshlrev_b32 {vr(G_TR)}, 6, {vr(G_T1)}')
    a(f'v_and_b32 {vr(G_T0)}, 3, {vr(G_L)}')
    a(f'v_lshl_add_u32 {vr(G_TR)}, {vr(G_T0)}, 3, {vr(G_TR)}')
    a(f'v_bfe_u32 {vr(G_T0)}, {vr(G_L)}, 4, 1')
    a(f'v_lshl_add_u32 {vr(G_TR)}, {vr(G_T0)}, 5, {vr(G_TR)}')

def gemm_main(a, sA, swap=False):
    a_loads(a, sA, 1)
    for i in range(16):
        a(f'v_mov_b32 {vr(G_ACC+i)}, 0')
    def tr_reads(ks, dst):
        g, s = divmod(ks, 4)
        off = g*4096 + s*512
        a(f'ds_read_b64_tr_b16 {vr(dst,2)}, {vr(G_TR)} offset:{off}')
        a(f'ds_read_b64_tr_b16 {vr(dst+2,2)}, {vr(G_TR)} offset:{off+256}')
    tr_reads(0, G_BF)
    nb = [8, 8, 8, 8, 4]
    for ks in range(36):
        batch, r = divmod(ks, 8)
        abase = G_ABUF + (batch % 2)*32 + r*4
        if ks + 1 < 36:
            tr_reads(ks+1, G_BF + ((ks+1) % 2)*4)
        if r == 0:
            nxt = nb[batch+1] if batch + 1 < 5 else 0
            a(f's_waitcnt vmcnt({nxt})')
        a(f's_waitcnt lgkmcnt({2 if ks+1 < 36 else 0})')
        X, W = vr(abase,4), vr(G_BF + (ks%2)*4,4)
        if swap:
            a(f'v_mfma_f32_32x32x16_bf16 {vr(G_ACC,16)}, {W}, {X}, {vr(G_ACC,16)}')
        else:
            a(f'v_mfma_f32_32x32x16_bf16 {vr(G_ACC,16)}, {X}, {W}, {vr(G_ACC,16)}')
        if r == 7 and batch + 2 < 5:
            a_loads(a, sA, batch + 2)
    a('s_nop 15')
    a('s_nop 3')

N_KGEN, N_QP, N_KV, N_UT = 576, 288, 32, 288
K1_GRID = N_KGEN + N_QP + N_KV + N_UT
K1_LDS = 36864

def gen_k1(a):
    kernel_header(a, 'prep_kernel')
    a('s_movk_i32 s90, 0x7fff')
    load_ptr(a, 4, A_U)
    load_ptr(a, 6, A_WS)
    a(f's_cmp_lt_u32 s2, {N_KGEN}')
    a('s_cbranch_scc1 K1_KGEN')
    a(f's_cmp_lt_u32 s2, {N_KGEN+N_QP}')
    a('s_cbranch_scc1 K1_QP')
    a(f's_cmp_lt_u32 s2, {N_KGEN+N_QP+N_KV}')
    a('s_cbranch_scc1 K1_KV')
    a(f's_cmp_lt_u32 s2, {K1_GRID}')
    a('s_cbranch_scc1 K1_UT')
    a('s_endpgm')

    a.label('K1_QP')
    load_ptr(a, 8, A_WQ)
    a(f's_sub_u32 s3, s2, {N_KGEN}')
    div_const(a, 12, 13, 3, 18, 14)
    a('s_lshl_b32 s12, s12, 7')
    a('s_lshl_b32 s13, s13, 5')
    gemm_lane_setup(a)
    gemm_a_setup(a, 12)
    a('s_waitcnt lgkmcnt(0)')
    BR = gemm_stage_b(a, 8, 13, 8)
    a_loads(a, 4, 0)
    gemm_stage_b_write(a, BR, 8)
    gemm_tr_setup(a)
    a('s_waitcnt lgkmcnt(0)')
    a('s_barrier')
    gemm_main(a, 4)
    ws_ptr(a, 16, 6, WS_Q)
    a(f's_mov_b32 s93, {f32bits(QSCALE)}')
    vo = G_T0
    a(f'v_lshlrev_b32 {vr(vo)}, 5, {vr(G_W)}')
    a(f'v_lshl_add_u32 {vr(vo)}, {vr(G_H)}, 2, {vr(vo)}')
    a(f'v_add_u32 {vr(vo)}, s12, {vr(vo)}')
    a(f'v_mul_lo_u32 {vr(vo)}, {vr(vo)}, s91')
    a(f'v_add_u32 {vr(G_T1)}, s13, {vr(G_I)}')
    a(f'v_lshl_add_u32 {vr(vo)}, {vr(G_T1)}, 1, {vr(vo)}')
    for r in range(16):
        a(f'v_mul_f32 {vr(G_ACC+r)}, s93, {vr(G_ACC+r)}')
    for r in range(0, 16, 2):
        a(f'v_cvt_pk_bf16_f32 {vr(G_ACC+r)}, {vr(G_ACC+r)}, {vr(G_ACC+r+1)}')
    for q in range(4):
        for ii in (0, 2):
            r = 4*q + ii
            a(f'global_store_short {vr(vo)}, {vr(G_ACC+r)}, s[16:17] offset:{ii*1152}')
            a(f'global_store_short_d16_hi {vr(vo)}, {vr(G_ACC+r)}, s[16:17] offset:{(ii+1)*1152}')
        if q < 3:
            a(f'v_add_u32 {vr(vo)}, {8*1152}, {vr(vo)}')
    a('s_endpgm')

    a.label('K1_KV')
    load_ptr(a, 8, A_WK)
    load_ptr(a, 10, A_WV)
    load_ptr(a, 18, A_GW)
    a(f's_sub_u32 s3, s2, {N_KGEN+N_QP}')
    a('s_and_b32 s15, s3, 1')
    a('s_lshr_b32 s12, s3, 1')
    a('s_lshl_b32 s12, s12, 7')
    gemm_lane_setup(a)
    gemm_a_setup(a, 12)
    a('s_waitcnt lgkmcnt(0)')
    a('s_cmp_eq_u32 s15, 0')
    a('s_cselect_b32 s8, s8, s10')
    a('s_cselect_b32 s9, s9, s11')
    a_loads(a, 4, 0)
    WR = G_ABUF + 32
    for j in range(3):
        if j == 2:
            a('v_cmp_gt_u32 vcc, 64, v0')
            a('s_and_saveexec_b64 s[20:21], vcc')
            a('s_cbranch_execz K1_KV_SKIP')
        a(f'v_add_u32 {vr(G_T0)}, {256*j}, v0')
        a(f'v_mul_u32_u24 {vr(G_T1)}, 36, {vr(G_T0)}')
        a(f'global_load_dwordx4 {vr(WR,4)}, {vr(G_T1)}, s[8:9]')
        a(f'global_load_dwordx4 {vr(WR+4,4)}, {vr(G_T1)}, s[8:9] offset:16')
        a(f'global_load_dword {vr(WR+8)}, {vr(G_T1)}, s[8:9] offset:32')
        a(f'v_lshlrev_b32 {vr(G_T2)}, 1, {vr(G_T0)}')
        a(f'global_load_ushort {vr(WR+9)}, {vr(G_T2)}, s[18:19]')
        for z in range(10, 16):
            a(f'v_mov_b32 {vr(WR+z)}, 0')
        a('s_waitcnt vmcnt(0)')
        a(f'v_mov_b32 {vr(G_T3)}, s15')
        a(f'v_cmp_eq_u32 vcc, 0, {vr(G_T3)}')
        a('s_nop 1')
        a(f'v_cndmask_b32 {vr(WR+9)}, 0, {vr(WR+9)}, vcc')
        a(f'v_lshlrev_b32 {vr(G_T2)}, 6, {vr(G_T0)}')
        for z in range(4):
            a(f'ds_write_b128 {vr(G_T2)}, {vr(WR+4*z,4)} offset:{16*z}')
        a('s_waitcnt lgkmcnt(0)')
        if j == 2:
            a.label('K1_KV_SKIP')
            a('s_mov_b64 exec, s[20:21]')
    gemm_tr_setup(a)
    a('s_barrier')
    a('s_cmp_eq_u32 s15, 1')
    a('s_cbranch_scc1 K1_KV_V')
    gemm_main(a, 4, swap=True)
    a(f's_lshr_b32 s13, s12, 5')
    a(f'v_add_u32 {vr(G_T0)}, s13, {vr(G_W)}')
    a(f'v_lshrrev_b32 {vr(G_T1)}, 5, {vr(G_T0)}')
    a(f'v_and_b32 {vr(G_T0)}, 31, {vr(G_T0)}')
    a(f's_mov_b32 s14, {PH_BYTES}')
    a(f'v_mul_lo_u32 {vr(G_T1)}, {vr(G_T1)}, s14')
    ws_ptr(a, 16, 6, WS_KVF)
    a(f'v_lshl_add_u32 {vr(G_T2)}, {vr(G_T0)}, 10, {vr(G_T1)}')
    a(f'v_lshl_add_u32 {vr(G_T2)}, {vr(G_I)}, 4, {vr(G_T2)}')
    a(f'v_lshl_add_u32 {vr(G_T2)}, {vr(G_H)}, 3, {vr(G_T2)}')
    for q in range(2):
        a(f'v_cvt_pk_bf16_f32 {vr(G_ACC+4*q)}, {vr(G_ACC+4*q)}, {vr(G_ACC+4*q+1)}')
        a(f'v_cvt_pk_bf16_f32 {vr(G_ACC+4*q+1)}, {vr(G_ACC+4*q+2)}, {vr(G_ACC+4*q+3)}')
        a(f'global_store_dwordx2 {vr(G_T2)}, {vr(G_ACC+4*q,2)}, s[16:17] offset:{KF1_OFF + q*512}')
    a(f'v_cmp_eq_u32 vcc, 0, {vr(G_H)}')
    a('s_and_saveexec_b64 s[20:21], vcc')
    a(f'v_lshl_add_u32 {vr(G_T2)}, {vr(G_T0)}, 8, {vr(G_T1)}')
    a(f'v_lshl_add_u32 {vr(G_T2)}, {vr(G_I)}, 3, {vr(G_T2)}')
    a(f'v_add_u32 {vr(G_T2)}, {KF2_OFF}, {vr(G_T2)}')
    a(f'v_cvt_pk_bf16_f32 {vr(G_ACC+12)}, {vr(G_ACC+8)}, {vr(G_ACC+9)}')
    a(f'v_mov_b32 {vr(G_ACC+13)}, 0x3f80')
    a(f'global_store_dwordx2 {vr(G_T2)}, {vr(G_ACC+12,2)}, s[16:17]')
    bf16r(a, G_ACC+10, G_T3)
    a(f'v_mul_f32 {vr(G_ACC+11)}, {f32bits(-LOG2E)}, {vr(G_ACC+10)}')
    a(f'v_exp_f32 {vr(G_ACC+11)}, {vr(G_ACC+11)}')
    a('s_nop 0')
    a(f'v_add_f32 {vr(G_ACC+11)}, 1.0, {vr(G_ACC+11)}')
    a(f'v_rcp_f32 {vr(G_ACC+11)}, {vr(G_ACC+11)}')
    a('s_nop 0')
    bf16r(a, G_ACC+11, G_T3)
    ws_ptr(a, 16, 6, WS_G)
    a(f'v_lshl_add_u32 {vr(G_T2)}, {vr(G_W)}, 5, {vr(G_I)}')
    a(f'v_add_u32 {vr(G_T2)}, s12, {vr(G_T2)}')
    a(f'v_lshlrev_b32 {vr(G_T2)}, 2, {vr(G_T2)}')
    a(f'global_store_dword {vr(G_T2)}, {vr(G_ACC+11)}, s[16:17]')
    a('s_endpgm')
    a.label('K1_KV_V')
    gemm_main(a, 4, swap=False)
    a(f's_lshr_b32 s13, s12, 5')
    a(f'v_add_u32 {vr(G_T0)}, s13, {vr(G_W)}')
    a(f'v_lshrrev_b32 {vr(G_T1)}, 5, {vr(G_T0)}')
    a(f'v_and_b32 {vr(G_T0)}, 31, {vr(G_T0)}')
    a(f's_mov_b32 s14, {PH_BYTES}')
    a(f'v_mul_lo_u32 {vr(G_T1)}, {vr(G_T1)}, s14')
    ws_ptr(a, 16, 6, WS_KVF)
    a(f'v_mul_lo_u32 {vr(G_T2)}, {vr(G_T0)}, s91')
    a(f'v_add_u32 {vr(G_T2)}, {vr(G_T1)}, {vr(G_T2)}')
    a(f'v_mul_u32_u24 {vr(G_T3)}, 18, {vr(G_H)}')
    a(f'v_add_u32 {vr(G_T3)}, {vr(G_I)}, {vr(G_T3)}')
    a(f'v_lshl_add_u32 {vr(G_T2)}, {vr(G_T3)}, 4, {vr(G_T2)}')
    a(f'v_add_u32 {vr(G_T2)}, {VF_OFF}, {vr(G_T2)}')
    a(f'v_cmp_gt_u32 vcc, 18, {vr(G_I)}')
    a('s_and_saveexec_b64 s[20:21], vcc')
    for q in range(4):
        a(f'v_cvt_pk_bf16_f32 {vr(G_ACC+4*q)}, {vr(G_ACC+4*q)}, {vr(G_ACC+4*q+1)}')
        a(f'v_cvt_pk_bf16_f32 {vr(G_ACC+4*q+1)}, {vr(G_ACC+4*q+2)}, {vr(G_ACC+4*q+3)}')
        a(f'global_store_dwordx2 {vr(G_T2)}, {vr(G_ACC+4*q,2)}, s[16:17] offset:{(q>>1)*576 + (q&1)*8}')
    a('s_endpgm')

    a.label('K1_UT')
    a(f's_sub_u32 s3, s2, {N_KGEN+N_QP+N_KV}')
    div_const(a, 12, 13, 3, 9, 14)
    a('s_movk_i32 s91, 1152')
    a('v_lshrrev_b32 v1, 3, v0')
    a('s_lshl_b32 s14, s12, 6')
    a('v_add_u32 v1, s14, v1')
    a('v_mul_lo_u32 v1, v1, s91')
    a('v_and_b32 v2, 7, v0')
    a('v_lshl_add_u32 v1, v2, 4, v1')
    a('s_lshl_b32 s15, s13, 7')
    a('v_add_u32 v1, s15, v1')
    a('s_waitcnt lgkmcnt(0)')
    a('global_load_dwordx4 v[8:11], v1, s[4:5]')
    a(f'v_add_u32 v1, {32*1152}, v1')
    a('global_load_dwordx4 v[12:15], v1, s[4:5]')
    a('v_lshlrev_b32 v3, 4, v0')
    a('s_waitcnt vmcnt(1)')
    a('ds_write_b128 v3, v[8:11]')
    a('s_waitcnt vmcnt(0)')
    a('ds_write_b128 v3, v[12:15] offset:4096')
    a('v_lshrrev_b32 v4, 6, v0')
    a('v_and_b32 v5, 15, v0')
    a('v_lshrrev_b32 v6, 2, v5')
    a('v_lshl_add_u32 v6, v4, 4, v6')
    a('v_lshlrev_b32 v6, 7, v6')
    a('v_bfe_u32 v7, v0, 4, 2')
    a('v_lshl_add_u32 v6, v7, 5, v6')
    a('v_and_b32 v2, 3, v0')
    a('v_lshl_add_u32 v6, v2, 3, v6')
    a('s_waitcnt lgkmcnt(0)')
    a('s_barrier')
    for e in range(4):
        a(f'ds_read_b64_tr_b16 v[{16+2*e}:{17+2*e}], v6 offset:{e*512}')
    a('v_lshl_add_u32 v7, v7, 4, v5')
    a('s_lshl_b32 s15, s13, 6')
    a('v_add_u32 v7, s15, v7')
    a('v_lshlrev_b32 v7, 12, v7')
    a('v_lshlrev_b32 v4, 5, v4')
    a('v_add_u32 v7, v4, v7')
    a('s_lshl_b32 s14, s12, 7')
    a('v_add_u32 v7, s14, v7')
    ws_ptr(a, 16, 6, WS_UT)
    a('s_waitcnt lgkmcnt(0)')
    a('global_store_dwordx4 v7, v[16:19], s[16:17]')
    a('global_store_dwordx4 v7, v[20:23], s[16:17] offset:16')
    a('s_endpgm')

    a.label('K1_KGEN')
    load_ptr(a, 8, A_LOGA); load_ptr(a, 10, A_AIM); load_ptr(a, 12, A_CRE); load_ptr(a, 14, A_CIM); load_ptr(a, 16, A_LOGDT)
    L, H, I, W = 1, 2, 3, 4
    VDT, VT0, VT1, VJ, VSUM = 5, 6, 7, 8, 9
    LA, AI, CR, CI = 12, 20, 28, 36
    D0, D1 = 44, 60
    FA0, FA1, FB = 76, 80, 84
    T = 88
    a(f'v_and_b32 v{L}, 63, v0')
    a(f'v_lshrrev_b32 v{W}, 6, v0')
    a(f'v_lshrrev_b32 v{H}, 5, v{L}')
    a(f'v_and_b32 v{I}, 31, v{L}')
    a(f'v_lshlrev_b32 v{T}, 6, v{W}')
    a(f'v_lshl_add_u32 v{T}, v{H}, 5, v{T}')
    a('s_lshl_b32 s3, s2, 8')
    a(f'v_add_u32 v{T}, s3, v{T}')
    a('s_lshl_b32 s3, s2, 1')
    a(f'v_mov_b32 v{T+1}, s3')
    a('s_waitcnt lgkmcnt(0)')
    a(f'global_load_ushort v{VDT}, v{T+1}, s[16:17]')
    for arr, sp in ((LA, 8), (AI, 10), (CR, 12), (CI, 14)):
        a(f'global_load_dwordx4 {vr(arr,4)}, v{T}, {sr(sp,2)}')
        a(f'global_load_dwordx4 {vr(arr+4,4)}, v{T}, {sr(sp,2)} offset:16')
    a(f'v_cvt_f32_u32 v{VT0}, v{I}')
    a(f'v_add_f32 v{VJ}, 1.0, v{VT0}')
    a(f'v_mul_f32 v{VT0}, 0x42000000, v{VT0}')
    a(f'v_add_f32 v{VT1}, 0x44800000, v{VT0}')
    a(f'v_mov_b32 v{VSUM}, 0')
    for i in range(16):
        a(f'v_mov_b32 v{D0+i}, 0')
        a(f'v_mov_b32 v{D1+i}, 0')
    a('s_waitcnt vmcnt(8)')
    a(f'v_lshlrev_b32 v{VDT}, 16, v{VDT}')
    a(f'v_mul_f32 v{VDT}, {f32bits(LOG2E)}, v{VDT}')
    a(f'v_exp_f32 v{VDT}, v{VDT}')
    a('s_nop 0')
    bf16r(a, VDT, T)
    a('s_waitcnt vmcnt(0)')
    a(f's_mov_b32 s20, {f32bits(LOG2E)}')
    a(f's_mov_b32 s21, {f32bits(1.0/(2*math.pi))}')
    for s in range(4):
        for i in range(4):
            n = 4*s + i
            reg, hi = n >> 1, n & 1
            A2, BB, CRr, CIi = T, T+1, T+2, T+3
            def unpack(dst, src):
                if hi: a(f'v_and_b32 v{dst}, 0xffff0000, v{src}')
                else:  a(f'v_lshlrev_b32 v{dst}, 16, v{src}')
            unpack(A2, LA+reg); unpack(BB, AI+reg); unpack(CRr, CR+reg); unpack(CIi, CI+reg)
            a(f'v_mul_f32 v{A2}, s20, v{A2}')
            a(f'v_exp_f32 v{A2}, v{A2}')
            a(f'v_mul_f32 v{BB}, v{VDT}, v{BB}')
            bf16r(a, A2, T+4)
            a(f'v_mul_f32 v{A2}, v{VDT}, v{A2}')
            a(f'v_mul_f32 v{BB}, s21, v{BB}')
            a(f'v_mul_f32 v{A2}, s20, v{A2}')
            a(f'v_mul_f32 v{CRr}, v{VDT}, v{CRr}')
            a(f'v_mul_f32 v{CIi}, v{VDT}, v{CIi}')
            a(f'v_add_f32 v{CRr}, v{CRr}, v{CRr}')
            a(f'v_add_f32 v{CIi}, v{CIi}, v{CIi}')
            a(f'v_add_f32 v{VSUM}, v{VSUM}, v{CRr}')
            E, P, C, S = T+4, T+7, T+10, T+13
            for k, tv in enumerate((VT0, VT1, VJ)):
                a(f'v_mul_f32 v{E+k}, -v{A2}, v{tv}')
                a(f'v_mul_f32 v{P+k}, v{BB}, v{tv}')
            for k in range(3):
                a(f'v_exp_f32 v{E+k}, v{E+k}')
                a(f'v_fract_f32 v{P+k}, v{P+k}')
            for k in range(3):
                a(f'v_cos_f32 v{C+k}, v{P+k}')
                a(f'v_sin_f32 v{S+k}, v{P+k}')
            R = T+16
            for k in range(2):
                a(f'v_mul_f32 v{R+2*k}, v{CRr}, v{C+k}')
                a(f'v_mul_f32 v{R+2*k+1}, v{CRr}, v{S+k}')
            for k in range(2):
                a(f'v_fma_f32 v{R+2*k}, -v{CIi}, v{S+k}, v{R+2*k}')
                a(f'v_fma_f32 v{R+2*k+1}, v{CIi}, v{C+k}, v{R+2*k+1}')
            for k in range(2):
                a(f'v_mul_f32 v{R+2*k}, v{E+k}, v{R+2*k}')
                a(f'v_mul_f32 v{R+2*k+1}, -v{E+k}, v{R+2*k+1}')
            a(f'v_mul_f32 v{C+2}, v{E+2}, v{C+2}')
            a(f'v_mul_f32 v{S+2}, v{E+2}, v{S+2}')
            a(f'v_cvt_pk_bf16_f32 v{FA0+i}, v{R}, v{R+1}')
            a(f'v_cvt_pk_bf16_f32 v{FA1+i}, v{R+2}, v{R+3}')
            a(f'v_cvt_pk_bf16_f32 v{FB+i}, v{C+2}, v{S+2}')
        a('s_nop 1')
        a(f'v_mfma_f32_32x32x16_bf16 {vr(D0,16)}, {vr(FA0,4)}, {vr(FB,4)}, {vr(D0,16)}')
        a(f'v_mfma_f32_32x32x16_bf16 {vr(D1,16)}, {vr(FA1,4)}, {vr(FB,4)}, {vr(D1,16)}')
    a('s_nop 15')
    a('s_nop 3')
    a(f's_movk_i32 s3, 8208')
    a(f'v_mul_lo_u32 v{T}, v{W}, s3')
    a(f'v_lshl_add_u32 v{T+1}, v{H}, 9, v{T}')
    a(f'v_lshl_add_u32 v{T+1}, v{I}, 2, v{T+1}')
    for tile, D in ((0, D0), (1, D1)):
        for r in range(16):
            q, ii = divmod(r, 4)
            a(f'ds_write_b32 v{T+1}, v{D+r} offset:{4 + 4096*tile + 1024*q + 128*ii}')
    a(f'v_readlane_b32 s3, v{VSUM}, 32')
    a('s_nop 1')
    a(f'v_add_f32 v{VSUM}, s3, v{VSUM}')
    a(f'v_cmp_eq_u32 vcc, 0, v{L}')
    a('s_and_saveexec_b64 s[22:23], vcc')
    a(f'ds_write_b32 v{T}, v{VSUM}')
    a('s_mov_b64 exec, s[22:23]')
    a('s_waitcnt lgkmcnt(0)')
    a('s_barrier')
    a(f'v_lshlrev_b32 v{T}, 3, v0')
    a(f'v_sub_u32 v{T+1}, 2047, v{T}')
    G = 12
    for e in range(8):
        a(f'v_subrev_u32 v{G+e}, {e}, v{T+1}')
        a(f'v_cvt_f32_u32 v{G+e}, v{G+e}')
    for e in range(8):
        bf16r(a, G+e, T+2)
    for e in range(8):
        a(f'v_cvt_u32_f32 v{G+e}, v{G+e}')
        a(f'v_lshlrev_b32 v{G+e}, 2, v{G+e}')
    for e in range(8):
        for w in range(4):
            a(f'ds_read_b32 v{20+4*e+w}, v{G+e} offset:{w*8208}')
    a('s_waitcnt lgkmcnt(0)')
    for e in range(8):
        b = 20 + 4*e
        a(f'v_add_f32 v{b}, v{b}, v{b+1}')
        a(f'v_add_f32 v{b+2}, v{b+2}, v{b+3}')
        a(f'v_add_f32 v{b}, v{b}, v{b+2}')
    for e in range(0, 8, 2):
        a(f'v_cvt_pk_bf16_f32 v{52+e//2}, v{20+4*e}, v{20+4*(e+1)}')
    ws_ptr(a, 16, 6, WS_KT)
    a(f's_mul_i32 s3, s2, {KT_ROW}')
    a(f'v_lshlrev_b32 v{T+1}, 4, v0')
    a(f'v_add_u32 v{T+1}, s3, v{T+1}')
    a(f'global_store_dwordx4 v{T+1}, v[52:55], s[16:17]')
    a(f'v_cmp_gt_u32 vcc, 8, v0')
    a('s_and_saveexec_b64 s[22:23], vcc')
    for i in range(4):
        a(f'v_mov_b32 v{56+i}, 0')
    a(f'v_add_u32 v{T+1}, 4096, v{T+1}')
    a(f'global_store_dwordx4 v{T+1}, v[56:59], s[16:17]')
    a('s_endpgm')

K2_GRID = 256
K2_THREADS = 704
CONV_LDS0 = PH_BYTES
CONV_SZ = 11264
K2_LDS = PH_BYTES + 3*CONV_SZ
THR = 8.0

def gen_k2(a):
    kernel_header(a, 'attn_kernel')
    a('s_movk_i32 s90, 0x7fff')
    a(f's_cmp_ge_u32 s2, {K2_GRID}')
    a('s_cbranch_scc1 K2_END')
    load_ptr(a, 6, A_WS)
    a('v_lshrrev_b32 v1, 6, v0')
    a('s_nop 0')
    a('v_readfirstlane_b32 s3, v1')
    a('s_nop 3')
    a('s_cmp_ge_u32 s3, 8')
    a('s_cbranch_scc1 K2_CONV')
    L, H, I = 1, 2, 3
    VK1, VK2, VV = 4, 5, 6
    VST, VGO = 7, 8
    VM, VMX, T0, T1, T2, T3 = 9, 10, 11, 12, 13, 14
    Q1, Q2 = 16, 20
    P = 24
    S = [32, 48]
    O = 64
    KA = [80, 84]; KB = [88, 90]; VA = [92, 100]
    STG = 108
    a(f'v_and_b32 v{L}, 63, v0')
    a(f'v_lshrrev_b32 v{H}, 5, v{L}')
    a(f'v_and_b32 v{I}, 31, v{L}')
    a('s_waitcnt lgkmcnt(0)')
    ws_ptr(a, 8, 6, WS_KVF)
    ws_ptr(a, 10, 6, WS_Q)
    ws_ptr(a, 12, 6, WS_O)
    a(f'v_lshlrev_b32 v{VST}, 4, v0')
    a(f'v_mov_b32 v{VGO}, v{VST}')
    def stage_loads():
        for j in range(10):
            a(f'global_load_dwordx4 {vr(STG+4*j,4)}, v{VGO}, s[8:9]')
            a(f'v_add_u32 v{VGO}, 8192, v{VGO}')
    def stage_writes(extra_outstanding):
        for j in range(10):
            a(f's_waitcnt vmcnt({9-j+extra_outstanding})')
            a(f'ds_write_b128 v{VST}, {vr(STG+4*j,4)} offset:{j*8192}' if j < 8 else
              f'ds_write_b128 v{T3}, {vr(STG+4*j,4)} offset:{(j-8)*8192}')
    a(f'v_add_u32 v{T3}, 65536, v{VST}')
    stage_loads()
    a('s_lshl_b32 s14, s2, 3')
    a('s_add_u32 s14, s14, s3')
    a('s_mul_i32 s14, s14, 1152')
    a(f'v_mul_u32_u24 v{T0}, 36, v{I}')
    a(f'v_add_u32 v{T0}, s14, v{T0}')
    a(f'v_lshl_add_u32 v{T1}, v{H}, 4, v{T0}')
    a(f'global_load_dwordx4 {vr(Q1,4)}, v{T1}, s[10:11]')
    a(f'global_load_dword v{Q2}, v{T0}, s[10:11] offset:32')
    a(f'v_mov_b32 v{T2}, v{T0}')
    a(f'v_mov_b32 v{Q2+1}, 0')
    a('s_mov_b32 s16, -1')
    a('s_mov_b32 s17, 0')
    a('s_mov_b32 s18, 0x3ffff')
    a('s_mov_b32 s19, 0x3ffff')
    a(f'v_lshlrev_b32 v{VK1}, 4, v{L}')
    a(f'v_lshlrev_b32 v{VK2}, 3, v{I}')
    a(f'v_add_u32 v{VK2}, {KF2_OFF}, v{VK2}')
    a(f'v_mul_u32_u24 v{VV}, 18, v{H}')
    a(f'v_add_u32 v{VV}, v{I}, v{VV}')
    a(f'v_lshlrev_b32 v{VV}, 4, v{VV}')
    a(f'v_add_u32 v{VV}, {VF_OFF}, v{VV}')
    for b in range(2):
        a(f'v_mov_b32 v{KB[b]}, 0'); a(f'v_mov_b32 v{KB[b]+1}, 0')
    a(f'v_cmp_eq_u32 vcc, 18, v{I}')
    a(f'v_mov_b32 v{T0}, 0x3f803f80')
    a('s_nop 1')
    a(f'v_cndmask_b32 v{T0}, 0, v{T0}, vcc')
    for b in range(2):
        for i in range(8):
            a(f'v_mov_b32 v{VA[b]+i}, v{T0}')
    for i in range(16):
        a(f'v_mov_b32 v{O+i}, 0')
    a(f'v_mov_b32 v{VM}, 0')
    a(f's_mov_b32 s20, 0xff7fffff')
    stage_writes(2)
    a('s_waitcnt vmcnt(0)')
    a(f'v_cmp_eq_u32 vcc, 0, v{H}')
    a('s_nop 1')
    a(f'v_cndmask_b32 v{Q2}, 0, v{Q2}, vcc')
    a('s_waitcnt lgkmcnt(0)')
    a('s_barrier')
    stage_loads()

    def k_reads(b, off):
        a(f'ds_read_b128 {vr(KA[b],4)}, v{VK1} offset:{off*1024}')
        a('s_mov_b64 exec, s[16:17]')
        a(f'ds_read_b64 {vr(KB[b],2)}, v{VK2} offset:{off*256}')
        a('s_mov_b64 exec, -1')
    def v_reads(b, off):
        a('s_mov_b64 exec, s[18:19]')
        a(f'ds_read_b128 {vr(VA[b],4)}, v{VV} offset:{off*1152}')
        a(f'ds_read_b128 {vr(VA[b]+4,4)}, v{VV} offset:{off*1152+576}')
        a('s_mov_b64 exec, -1')
    def qk(b, sb):
        a(f'v_mfma_f32_32x32x16_bf16 {vr(S[sb],16)}, {vr(KA[b],4)}, {vr(Q1,4)}, 0')
        a(f'v_mfma_f32_32x32x8_bf16 {vr(S[sb],16)}, {vr(KB[b],2)}, {vr(Q2,2)}, {vr(S[sb],16)}')

    for phase in range(2):
        ph = f'P{phase}'
        k_reads(0, 0)
        k_reads(1, 1)
        v_reads(0, 0)
        a('s_waitcnt lgkmcnt(4)')
        qk(0, 0)
        a('s_mov_b32 s21, 0')
        a.label(f'K2_LOOP_{ph}')
        for b in range(2):
            nb = b ^ 1
            a('s_waitcnt lgkmcnt(2)')
            qk(nb, nb)
            k_reads(b, b + 2)
            v_reads(nb, b + 1)
            Sb = S[b]
            a(f'v_max3_f32 v{VMX}, v{Sb}, v{Sb+1}, v{Sb+2}')
            for i in range(3, 15, 2):
                a(f'v_max3_f32 v{VMX}, v{VMX}, v{Sb+i}, v{Sb+i+1}')
            a(f'v_max_f32 v{VMX}, v{VMX}, v{Sb+15}')
            a(f'v_cmp_lt_f32 vcc, s20, v{VMX}')
            a(f's_cbranch_vccnz K2_SLOW_{ph}_{b}')
            a.label(f'K2_BACK_{ph}_{b}')
            for i in range(16):
                a(f'v_exp_f32 v{Sb+i}, v{Sb+i}')
            a('s_nop 0')
            for i in range(8):
                a(f'v_cvt_pk_bf16_f32 v{P+i}, v{Sb+2*i}, v{Sb+2*i+1}')
            a('s_waitcnt lgkmcnt(4)')
            a(f'v_mfma_f32_32x32x16_bf16 {vr(O,16)}, {vr(VA[b],4)}, {vr(P,4)}, {vr(O,16)}')
            a(f'v_mfma_f32_32x32x16_bf16 {vr(O,16)}, {vr(VA[b]+4,4)}, {vr(P+4,4)}, {vr(O,16)}')
        a(f'v_add_u32 v{VK1}, 2048, v{VK1}')
        a(f'v_add_u32 v{VK2}, 512, v{VK2}')
        a(f'v_add_u32 v{VV}, 2304, v{VV}')
        a('s_add_u32 s21, s21, 1')
        a('s_cmp_lt_u32 s21, 16')
        a(f's_cbranch_scc1 K2_LOOP_{ph}')
        if phase == 0:
            a('s_waitcnt lgkmcnt(0)')
            a('s_barrier')
            stage_writes(0)
            a(f'v_subrev_u32 v{VK1}, {16*2048}, v{VK1}')
            a(f'v_subrev_u32 v{VK2}, {16*512}, v{VK2}')
            a(f'v_subrev_u32 v{VV}, {16*2304}, v{VV}')
            a('s_waitcnt lgkmcnt(0)')
            a('s_barrier')
    a('s_branch K2_FIN')
    for phase in range(2):
        ph = f'P{phase}'
        for b in range(2):
            nb = b ^ 1
            Sb, Sn = S[b], S[nb]
            a.label(f'K2_SLOW_{ph}_{b}')
            a(f'v_mov_b32 v{T0}, v{VMX}')
            a(f'v_mov_b32 v{T1}, v{VMX}')
            a('s_nop 1')
            a(f'v_permlane32_swap_b32 v{T0}, v{T1}')
            a('s_nop 1')
            a(f'v_max_f32 v{T0}, v{T0}, v{T1}')
            a('s_cmp_lt_i32 s20, 0')
            a(f's_cbranch_scc1 K2_SL1_{ph}_{b}')
            a(f'v_max_f32 v{T0}, 0, v{T0}')
            a.label(f'K2_SL1_{ph}_{b}')
            a(f's_mov_b32 s20, {f32bits(THR)}')
            a(f'v_add_f32 v{T1}, v{VM}, v{T0}')
            bf16r(a, T1, T0)
            a(f'v_sub_f32 v{T0}, v{T1}, v{VM}')
            a(f'v_mov_b32 v{VM}, v{T1}')
            a('s_nop 15')
            a('s_nop 7')
            for i in range(16):
                a(f'v_sub_f32 v{Sb+i}, v{Sb+i}, v{T0}')
                a(f'v_sub_f32 v{Sn+i}, v{Sn+i}, v{T0}')
            a(f'v_sub_f32 v{T0}, 0, v{T0}')
            a(f'v_exp_f32 v{T0}, v{T0}')
            a('s_nop 0')
            for i in range(16):
                a(f'v_mul_f32 v{O+i}, v{O+i}, v{T0}')
            a(f'v_xor_b32 v{T1}, 0x80000000, v{T1}')
            a(f'v_lshrrev_b32 v{T1}, 16, v{T1}')
            a('s_mov_b64 exec, s[16:17]')
            a(f'v_mov_b32 v{Q2+1}, v{T1}')
            a('s_mov_b64 exec, -1')
            a('s_nop 1')
            a(f's_branch K2_BACK_{ph}_{b}')
    a.label('K2_FIN')
    a('s_nop 15')
    a('s_nop 3')
    a(f'v_mov_b32 v{T0}, v{O+10}')
    a(f'v_mov_b32 v{T1}, v{O+10}')
    a('s_nop 1')
    a(f'v_permlane32_swap_b32 v{T0}, v{T1}')
    a('s_nop 1')
    a(f'v_rcp_f32 v{T0}, v{T0}')
    a('s_nop 0')
    for i in range(10):
        a(f'v_mul_f32 v{O+i}, v{O+i}, v{T0}')
    for i in range(0, 10, 2):
        a(f'v_cvt_pk_bf16_f32 v{P+i//2}, v{O+i}, v{O+i+1}')
    a(f'v_lshl_add_u32 v{T1}, v{H}, 3, v{T2}')
    a(f'global_store_dwordx2 v{T1}, {vr(P,2)}, s[12:13]')
    a(f'global_store_dwordx2 v{T1}, {vr(P+2,2)}, s[12:13] offset:16')
    a('s_mov_b64 exec, s[16:17]')
    a(f'global_store_dword v{T1}, v{P+4}, s[12:13] offset:32')
    a('s_endpgm')

    a.label('K2_CONV')
    a('s_sub_u32 s3, s3, 8')
    a('s_lshl_b32 s14, s3, 8')
    a('s_add_u32 s14, s14, s2')
    a('s_cmp_ge_u32 s14, 576')
    a('s_cbranch_scc1 K2_END')
    L, H, I = 1, 2, 3
    VA_, VB_ = 4, 5
    a(f'v_and_b32 v{L}, 63, v0')
    a(f'v_lshrrev_b32 v{H}, 5, v{L}')
    a(f'v_and_b32 v{I}, 31, v{L}')
    a('s_waitcnt lgkmcnt(0)')
    ws_ptr(a, 8, 6, WS_KT)
    ws_ptr(a, 10, 6, WS_UT)
    ws_ptr(a, 12, 6, WS_YT)
    a(f's_mul_i32 s15, s3, {CONV_SZ}')
    a(f's_add_u32 s15, s15, {CONV_LDS0}')
    a(f's_mul_i32 s16, s14, {KT_ROW}')
    a(f'v_lshlrev_b32 v6, 4, v{L}')
    a(f'v_add_u32 v7, s16, v6')
    for j in range(5):
        a(f'global_load_dwordx4 {vr(16+4*j,4)}, v7, s[8:9] offset:{j*1024}' if j < 4 else f'v_add_u32 v9, 4096, v7\nglobal_load_dwordx4 {vr(16+4*j,4)}, v9, s[8:9]')
    a('s_lshl_b32 s16, s14, 12')
    a(f'v_add_u32 v7, s16, v6')
    for j in range(4):
        a(f'global_load_dwordx4 {vr(36+4*j,4)}, v7, s[10:11] offset:{j*1024}')
    a('s_barrier')
    a(f'v_add_u32 v8, s15, v6')
    for i in range(4):
        a(f'v_mov_b32 v{52+i}, 0')
    a(f'ds_write_b128 v8, v[52:55] offset:5120')
    a(f'ds_write_b128 v8, v[52:55] offset:6144')
    for j in range(5):
        a(f's_waitcnt vmcnt({8-j})')
        a(f'ds_write_b128 v8, {vr(16+4*j,4)} offset:{j*1024}')
    for j in range(4):
        a(f's_waitcnt vmcnt({3-j})')
        a(f'ds_write_b128 v8, {vr(36+4*j,4)} offset:{7168 + j*1024}')
    a(f'v_lshlrev_b32 v{VA_}, 3, v{H}')
    a(f'v_sub_u32 v{VA_}, v{VA_}, v{I}')
    a(f'v_add_u32 v{VA_}, 2047, v{VA_}')
    a(f'v_lshlrev_b32 v{VA_}, 1, v{VA_}')
    a(f'v_add_u32 v{VA_}, s15, v{VA_}')
    a(f'v_lshlrev_b32 v{VB_}, 6, v{I}')
    a(f'v_lshl_add_u32 v{VB_}, v{H}, 4, v{VB_}')
    a(f'v_add_u32 v{VB_}, s15, v{VB_}')
    a(f'v_add_u32 v{VB_}, 7168, v{VB_}')
    Y = [64, 80]
    FA = [16, 24]
    FBq = [32, 48]
    for i in range(32):
        a(f'v_mov_b32 v{64+i}, 0')
    a('s_waitcnt lgkmcnt(0)')
    def reads(buf, both):
        a(f'ds_read_b128 {vr(FA[buf],4)}, v{VA_}')
        a(f'ds_read_b128 {vr(FA[buf]+4,4)}, v{VA_} offset:32')
        if both:
            a(f'ds_read_b128 {vr(FBq[buf],4)}, v{VB_}')
            a(f'ds_read_b128 {vr(FBq[buf]+4,4)}, v{VB_} offset:32')
        a(f'ds_read_b128 {vr(FBq[buf]+8,4)}, v{VB_} offset:2048')
        a(f'ds_read_b128 {vr(FBq[buf]+12,4)}, v{VB_} offset:2080')
        a(f'v_subrev_u32 v{VA_}, 64, v{VA_}')
        a(f'v_subrev_u32 v{VB_}, 64, v{VB_}')
    def mfmas(buf, both):
        if both:
            a(f'v_mfma_f32_32x32x16_bf16 {vr(Y[0],16)}, {vr(FA[buf],4)}, {vr(FBq[buf],4)}, {vr(Y[0],16)}')
            a(f'v_mfma_f32_32x32x16_bf16 {vr(Y[0],16)}, {vr(FA[buf]+4,4)}, {vr(FBq[buf]+4,4)}, {vr(Y[0],16)}')
        a(f'v_mfma_f32_32x32x16_bf16 {vr(Y[1],16)}, {vr(FA[buf],4)}, {vr(FBq[buf]+8,4)}, {vr(Y[1],16)}')
        a(f'v_mfma_f32_32x32x16_bf16 {vr(Y[1],16)}, {vr(FA[buf]+4,4)}, {vr(FBq[buf]+12,4)}, {vr(Y[1],16)}')
    reads(0, True)
    a('s_mov_b32 s17, 0')
    a.label('K2_CV1')
    reads(1, True)
    a('s_waitcnt lgkmcnt(6)')
    mfmas(0, True)
    a('s_add_u32 s17, s17, 1')
    a('s_cmp_lt_u32 s17, 16')
    a('s_cbranch_scc0 K2_CV1X')
    reads(0, True)
    a('s_waitcnt lgkmcnt(6)')
    mfmas(1, True)
    a('s_branch K2_CV1')
    a.label('K2_CV1X')
    reads(0, False)
    a('s_waitcnt lgkmcnt(4)')
    mfmas(1, True)
    a('s_mov_b32 s17, 0')
    a.label('K2_CV2')
    reads(1, False)
    a('s_waitcnt lgkmcnt(4)')
    mfmas(0, False)
    a('s_add_u32 s17, s17, 1')
    a('s_cmp_lt_u32 s17, 16')
    a('s_cbranch_scc0 K2_CV2X')
    reads(0, False)
    a('s_waitcnt lgkmcnt(4)')
    mfmas(1, False)
    a('s_branch K2_CV2')
    a.label('K2_CV2X')
    a('s_waitcnt lgkmcnt(0)')
    mfmas(1, False)
    a('s_nop 15')
    a('s_nop 3')
    a(f'v_lshlrev_b32 v6, 6, v{I}')
    a(f'v_lshl_add_u32 v6, v{H}, 3, v6')
    a('s_lshl_b32 s16, s14, 12')
    a('v_add_u32 v6, s16, v6')
    for ct in range(2):
        for q in range(4):
            y = Y[ct] + 4*q
            a(f'v_cvt_pk_bf16_f32 v{y}, v{y}, v{y+1}')
            a(f'v_cvt_pk_bf16_f32 v{y+1}, v{y+2}, v{y+3}')
            a(f'global_store_dwordx2 v6, {vr(y,2)}, s[12:13] offset:{ct*2048 + q*16}')
    a.label('K2_END')
    a('s_endpgm')

K3_GRID = 288
def gen_k3(a):
    kernel_header(a, 'outp_kernel')
    a('s_movk_i32 s90, 0x7fff')
    a(f's_cmp_ge_u32 s2, {K3_GRID}')
    a('s_cbranch_scc1 K3_END')
    load_ptr(a, 4, A_U); load_ptr(a, 6, A_WS); load_ptr(a, 8, A_WO); load_ptr(a, 10, A_DSKIP); load_ptr(a, 18, A_OUT)
    div_const(a, 12, 13, 2, 18, 14)
    a('s_lshl_b32 s12, s12, 7')
    a('s_lshl_b32 s13, s13, 5')
    gemm_lane_setup(a)
    gemm_a_setup(a, 12)
    a('s_waitcnt lgkmcnt(0)')
    ws_ptr(a, 16, 6, WS_O)
    BR = gemm_stage_b(a, 8, 13, 8)
    a_loads(a, 16, 0)
    gemm_stage_b_write(a, BR, 8)
    gemm_tr_setup(a)
    a('s_waitcnt lgkmcnt(0)')
    a('s_barrier')
    gemm_main(a, 16)
    ws_ptr(a, 20, 6, WS_G)
    ws_ptr(a, 22, 6, WS_YT)
    R0 = G_T0
    a(f'v_lshlrev_b32 v{R0}, 5, {vr(G_W)}')
    a(f'v_lshl_add_u32 v{R0}, {vr(G_H)}, 2, v{R0}')
    a(f'v_add_u32 v{R0}, s12, v{R0}')
    a(f'v_add_u32 {vr(G_T1)}, s13, {vr(G_I)}')
    GV, YV, UV = G_ABUF, G_ABUF+16, G_ABUF+24
    DS = G_ABUF + 40
    a(f'v_lshlrev_b32 {vr(G_T2)}, 2, v{R0}')
    for q in range(4):
        a(f'global_load_dwordx4 {vr(GV+4*q,4)}, {vr(G_T2)}, s[20:21] offset:{q*32}')
    a(f'v_lshlrev_b32 {vr(G_T2)}, 12, {vr(G_T1)}')
    a(f'v_lshl_add_u32 {vr(G_T2)}, v{R0}, 1, {vr(G_T2)}')
    for q in range(4):
        a(f'global_load_dwordx2 {vr(YV+2*q,2)}, {vr(G_T2)}, s[22:23] offset:{q*16}')
    a(f'v_lshlrev_b32 {vr(G_T2)}, 1, {vr(G_T1)}')
    a(f'global_load_ushort v{DS}, {vr(G_T2)}, s[10:11]')
    vo = G_T3
    a(f'v_mul_lo_u32 v{vo}, v{R0}, s91')
    a(f'v_lshl_add_u32 v{vo}, {vr(G_T1)}, 1, v{vo}')
    a(f'v_mov_b32 {vr(G_T2)}, v{vo}')
    for q in range(4):
        for ii in range(4):
            a(f'global_load_ushort v{UV+4*q+ii}, {vr(G_T2)}, s[4:5] offset:{ii*1152}')
        if q < 3:
            a(f'v_add_u32 {vr(G_T2)}, {8*1152}, {vr(G_T2)}')
    a('s_waitcnt vmcnt(0)')
    a(f'v_lshlrev_b32 v{DS}, 16, v{DS}')
    TT = G_ABUF + 44
    for r in range(16):
        q, ii = divmod(r, 4)
        b = G_ACC + r
        bf16r(a, b, TT)
        u = UV + r
        a(f'v_lshlrev_b32 v{u}, 16, v{u}')
        a(f'v_mul_f32 v{u}, v{u}, v{DS}')
        bf16r(a, u, TT)
        yreg = YV + 2*q + (ii >> 1)
        if ii & 1: a(f'v_and_b32 v{TT+1}, 0xffff0000, v{yreg}')
        else:      a(f'v_lshlrev_b32 v{TT+1}, 16, v{yreg}')
        a(f'v_add_f32 v{u}, v{TT+1}, v{u}')
        bf16r(a, u, TT)
        g = GV + r
        a(f'v_mul_f32 v{u}, v{g}, v{u}')
        bf16r(a, u, TT)
        a(f'v_sub_f32 v{TT+1}, 1.0, v{g}')
        bf16r(a, TT+1, TT)
        a(f'v_mul_f32 v{b}, v{TT+1}, v{b}')
        bf16r(a, b, TT)
        a(f'v_add_f32 v{b}, v{u}, v{b}')
    for r in range(0, 16, 2):
        a(f'v_cvt_pk_bf16_f32 {vr(G_ACC+r)}, {vr(G_ACC+r)}, {vr(G_ACC+r+1)}')
    for q in range(4):
        for ii in (0, 2):
            r = 4*q + ii
            a(f'global_store_short v{vo}, {vr(G_ACC+r)}, s[18:19] offset:{ii*1152}')
            a(f'global_store_short_d16_hi v{vo}, {vr(G_ACC+r)}, s[18:19] offset:{(ii+1)*1152}')
        if q < 3:
            a(f'v_add_u32 v{vo}, {8*1152}, v{vo}')
    a.label('K3_END')
    a('s_endpgm')

def main(outpath):
    hdr = open('gated_mix__ssm_conv_s4d__grouped_kv_mqa__prompt.s.ref').read().split('\n')
    head = [l for l in hdr if l.startswith(';') and '@launch' not in l and 'Override launch' not in l and 'grid=ceil' not in l]
    out = '\n'.join(head) + '\n'
    out += f'; @launch kernel=prep_kernel grid=({K1_GRID},1,1) block=(256,1,1) lds={K1_LDS}\n'
    out += f'; @launch kernel=attn_kernel grid=({K2_GRID},1,1) block=({K2_THREADS},1,1) lds={K2_LDS}\n'
    out += f'; @launch kernel=outp_kernel grid=({K3_GRID},1,1) block=(256,1,1) lds={K1_LDS}\n'
    out += '.amdgcn_target "amdgcn-amd-amdhsa--gfx950"\n'
    a = Asm()
    gen_k1(a); gen_k2(a); gen_k3(a)
    out += a.text()
    out += kernel_desc('prep_kernel', 112)
    out += kernel_desc('attn_kernel', 148)
    out += kernel_desc('outp_kernel', 112)
    open(outpath, 'w').write(out)

if __name__ == '__main__':
    main(sys.argv[1] if len(sys.argv) > 1 else 'gated_mix__ssm_conv_s4d__grouped_kv_mqa__prompt.s')
```

```python
import math, sys, struct

WS_Q   = 0
WS_O   = 2359296
WS_KVF = 4718592
PH_BYTES = 81920
PH_USED = 77824
KF1_OFF = 0
KF2_OFF = 32768
VF_OFF  = 40960
WS_G   = 4882432
WS_KMAX = 14483456
WS_KT  = 4890624
KT_HALF = 4224
KT_ROW = 8448
WS_UT  = 12124160
WS_YT  = 9764864

LOG2E = 1.4426950408889634
QSCALE = LOG2E / math.sqrt(18.0)
INSTR = False

def f32bits(x):
    return struct.unpack('<I', struct.pack('<f', x))[0]

class Asm:
    def __init__(self):
        self.lines = []
    def __call__(self, s):
        for ln in s.strip('\n').split('\n'):
            self.lines.append('    ' + ln.strip())
    def label(self, name):
        self.lines.append(name + ':')
    def raw(self, s):
        self.lines.append(s)
    def text(self):
        return '\n'.join(self.lines) + '\n'

def vr(a, n=1):
    return f'v{a}' if n == 1 else f'v[{a}:{a+n-1}]'
def sr(a, n=1):
    return f's{a}' if n == 1 else f's[{a}:{a+n-1}]'

TL = False
def tl_start(a):
    if TL:
        a('s_memrealtime s[80:81]')
def tl_end(a, kidx):
    if TL:
        a('s_memrealtime s[82:83]')
        load_ptr(a, 84, A_WS)
        a('s_waitcnt lgkmcnt(0) vmcnt(0)')
        a('s_mov_b64 exec, -1')
        a('v_cmp_eq_u32 vcc, 0, v0')
        a('s_and_saveexec_b64 s[86:87], vcc')
        a(f's_lshl_b32 s78, s2, 4')
        a(f's_add_u32 s78, s78, {0x3000000 + kidx*0x10000}')
        a('v_mov_b32 v1, s78')
        a('v_mov_b32 v2, s80')
        a('v_mov_b32 v3, s82')
        a('global_store_dwordx2 v1, v[2:3], s[84:85]')

def kernel_header(a, name):
    a.raw('.text')
    a.raw(f'.globl {name}')
    a.raw('.p2align 8')
    a.raw(f'.type {name},@function')
    a.label(name)

def kernel_desc(name, vgpr, sgpr=96):
    acc = (vgpr + 3) // 4 * 4
    return f'''.section .rodata,"a"
.p2align 6
.amdhsa_kernel {name}
  .amdhsa_next_free_vgpr {vgpr}
  .amdhsa_next_free_sgpr {sgpr}
  .amdhsa_accum_offset {acc}
  .amdhsa_group_segment_fixed_size 0
  .amdhsa_kernarg_size 128
  .amdhsa_user_sgpr_count 2
  .amdhsa_user_sgpr_kernarg_segment_ptr 1
  .amdhsa_system_sgpr_workgroup_id_x 1
.end_amdhsa_kernel
'''

A_U, A_LOGA, A_AIM, A_CRE, A_CIM, A_LOGDT, A_DSKIP, A_BX, A_WQ, A_WK, A_WV, A_WO, A_GW, A_OUT, A_DBG, A_WS = range(16)

def load_ptr(a, sdst, slot):
    a(f's_load_dwordx2 {sr(sdst,2)}, s[0:1], {slot*8}')
def ws_ptr(a, sdst, sws, off):
    a(f's_add_u32 {sr(sdst)}, {sr(sws)}, {off}')
    a(f's_addc_u32 {sr(sdst+1)}, {sr(sws+1)}, 0')
def bf16r(a, v, tmp):
    a(f'v_bfe_u32 {vr(tmp)}, {vr(v)}, 16, 1')
    a(f'v_add3_u32 {vr(v)}, {vr(v)}, {vr(tmp)}, s90')
    a(f'v_and_b32 {vr(v)}, 0xffff0000, {vr(v)}')
def div_const(a, sq, srem, ssrc, c, stmp):
    magic = (2**32 + c - 1)//c
    a(f's_mov_b32 {sr(stmp)}, {magic}')
    a(f's_mul_hi_u32 {sr(sq)}, {sr(ssrc)}, {sr(stmp)}')
    a(f's_mul_i32 {sr(stmp)}, {sr(sq)}, {c}')
    a(f's_sub_u32 {sr(srem)}, {sr(ssrc)}, {sr(stmp)}')
def stamp(a, k):
    if INSTR:
        a(f's_memtime s[{60+2*k}:{61+2*k}]')
def dump_stamps(a, n, cond_label, slot_sgpr_expr):
    load_ptr(a, 72, A_DBG)
    a('s_waitcnt lgkmcnt(0)')
    a('s_lshl_b32 s74, s74, 5')
    a('v_mov_b32 v1, s74')
    for k in range(1, n+1):
        a(f's_sub_u32 s75, s{60+2*k}, s60')
        a('v_mov_b32 v2, s75')
        a(f'global_store_dword v1, v2, s[72:73] offset:{4*k}')

G_L, G_G, G_I, G_W, G_AOFF, G_BOFF, G_LDS, G_TR, G_T0, G_T1, G_T2, G_T3 = range(1, 13)
G_BF = 16
G_ACC = 32
G_ABUF = 48
G_FREE = 192

def gemm_lane_setup(a):
    a(f'v_and_b32 {vr(G_L)}, 63, v0')
    a(f'v_lshrrev_b32 {vr(G_W)}, 6, v0')
    a(f'v_lshrrev_b32 {vr(G_G)}, 4, {vr(G_L)}')
    a(f'v_and_b32 {vr(G_I)}, 15, {vr(G_L)}')
    a('s_movk_i32 s91, 1152')
    a(f'v_readfirstlane_b32 s89, {vr(G_W)}')

def gemm_a_setup(a, s_m0):
    a(f'v_lshl_add_u32 {vr(G_AOFF)}, {vr(G_W)}, 5, {vr(G_I)}')
    a(f'v_add_u32 {vr(G_AOFF)}, {sr(s_m0)}, {vr(G_AOFF)}')
    a(f'v_mul_lo_u32 {vr(G_AOFF)}, {vr(G_AOFF)}, s91')
    a(f'v_lshl_add_u32 {vr(G_AOFF)}, {vr(G_G)}, 4, {vr(G_AOFF)}')
    a(f'v_add_u32 {vr(G_LDS)}, {16*1152}, {vr(G_AOFF)}')

def a_load(a, sA, ks):
    base = G_ABUF + ks*8
    a(f'global_load_dwordx4 {vr(base, 4)}, {vr(G_AOFF)}, {sr(sA,2)} offset:{ks*64}')
    a(f'global_load_dwordx4 {vr(base+4, 4)}, {vr(G_LDS)}, {sr(sA,2)} offset:{ks*64}')

def gemm_stage_b_dma(a, sB, s_n0):
    a(f'v_lshrrev_b32 {vr(G_BOFF)}, 2, v0')
    a(f'v_mul_lo_u32 {vr(G_BOFF)}, {vr(G_BOFF)}, s91')
    a(f'v_and_b32 {vr(G_T0)}, 3, v0')
    a(f'v_lshl_add_u32 {vr(G_BOFF)}, {vr(G_T0)}, 4, {vr(G_BOFF)}')
    a(f's_lshl_b32 s92, {sr(s_n0)}, 1')
    a(f'v_add_u32 {vr(G_BOFF)}, s92, {vr(G_BOFF)}')
    a('s_lshl_b32 s88, s89, 10')
    for j in range(9):
        a(f's_add_u32 m0, s88, {j*4096}')
        a('s_nop 0')
        a(f'global_load_lds_dwordx4 {vr(G_BOFF)}, {sr(sB,2)}')
        if j < 8:
            a(f'v_add_u32 {vr(G_BOFF)}, 0x12000, {vr(G_BOFF)}')

def gemm_tr_setup(a):
    a(f'v_lshrrev_b32 {vr(G_T1)}, 2, {vr(G_I)}')
    a(f'v_lshl_add_u32 {vr(G_T1)}, {vr(G_G)}, 3, {vr(G_T1)}')
    a(f'v_lshlrev_b32 {vr(G_TR)}, 6, {vr(G_T1)}')
    a(f'v_and_b32 {vr(G_T0)}, 3, {vr(G_I)}')
    a(f'v_lshl_add_u32 {vr(G_TR)}, {vr(G_T0)}, 3, {vr(G_TR)}')

def gemm_main(a, sA, swap=False, young=0):
    def tr_reads(ks):
        off = ks*2048
        dst = G_BF + (ks % 2)*8
        for nt in range(2):
            a(f'ds_read_b64_tr_b16 {vr(dst+4*nt,2)}, {vr(G_TR)} offset:{off + 32*nt}')
            a(f'ds_read_b64_tr_b16 {vr(dst+4*nt+2,2)}, {vr(G_TR)} offset:{off + 32*nt + 256}')
    tr_reads(0)
    for ks in range(18):
        if ks + 1 < 18:
            tr_reads(ks + 1)
        vm = min(63, 2*(17 - ks) + young)
        a(f's_waitcnt vmcnt({vm}) lgkmcnt({4 if ks + 1 < 18 else 0})')
        for mt in range(2):
            for nt in range(2):
                X, W = vr(G_ABUF + ks*8 + 4*mt, 4), vr(G_BF + (ks % 2)*8 + 4*nt, 4)
                D = vr(G_ACC + 8*mt + 4*nt, 4)
                C = D if ks else '0'
                if swap:
                    a(f'v_mfma_f32_16x16x32_bf16 {D}, {W}, {X}, {C}')
                else:
                    a(f'v_mfma_f32_16x16x32_bf16 {D}, {X}, {W}, {C}')
    a('s_nop 15')

N_KGEN, N_QP, N_KV = 192, 288, 32
K1_GRID = N_KGEN + N_QP + N_KV
KG_ROW = 528
K1_LDS = 96 * KG_ROW

def gen_k1(a):
    kernel_header(a, 'prep_kernel')
    tl_start(a)
    a('s_movk_i32 s90, 0x7fff')
    load_ptr(a, 4, A_U)
    load_ptr(a, 6, A_WS)
    a(f's_cmp_lt_u32 s2, {N_KGEN}')
    a('s_cbranch_scc1 K1_KGEN')
    a(f's_cmp_lt_u32 s2, {N_KGEN+N_QP}')
    a('s_cbranch_scc1 K1_QP')
    a(f's_cmp_lt_u32 s2, {K1_GRID}')
    a('s_cbranch_scc1 K1_KV')
    a('s_endpgm')

    a.label('K1_QP')
    load_ptr(a, 8, A_WQ)
    a(f's_sub_u32 s3, s2, {N_KGEN}')
    a('s_and_b32 s15, s3, 7')
    a('s_lshr_b32 s3, s3, 3')
    div_const(a, 12, 13, 3, 18, 14)
    a('s_lshl_b32 s12, s12, 3')
    a('s_add_u32 s12, s12, s15')
    a('s_lshl_b32 s12, s12, 7')
    a('s_lshl_b32 s13, s13, 5')
    gemm_lane_setup(a)
    gemm_a_setup(a, 12)
    a('s_waitcnt lgkmcnt(0)')
    gemm_stage_b_dma(a, 8, 13)
    UTR = G_FREE
    a(f's_lshl_b32 s92, s13, 1')
    a(f'v_add_u32 {vr(G_T2)}, s92, {vr(G_AOFF)}')
    a(f'v_add_u32 {vr(G_T3)}, s92, {vr(G_LDS)}')
    a(f'global_load_dwordx4 {vr(UTR,4)}, {vr(G_T2)}, s[4:5]')
    a(f'global_load_dwordx4 {vr(UTR+4,4)}, {vr(G_T3)}, s[4:5]')
    for ks in range(18):
        a_load(a, 4, ks)
    gemm_tr_setup(a)
    a('s_waitcnt vmcnt(36)')
    a('s_barrier')
    ws_ptr(a, 16, 6, WS_UT)
    a(f'v_lshl_add_u32 {vr(G_T2)}, {vr(G_G)}, 3, s13')
    a(f'v_lshlrev_b32 {vr(G_T2)}, 12, {vr(G_T2)}')
    a(f'v_lshl_add_u32 {vr(G_T3)}, {vr(G_W)}, 5, {vr(G_I)}')
    a(f'v_add_u32 {vr(G_T3)}, s12, {vr(G_T3)}')
    a(f'v_lshl_add_u32 {vr(G_T2)}, {vr(G_T3)}, 1, {vr(G_T2)}')
    for j in range(8):
        for mt in range(2):
            r = UTR + 4*mt + (j >> 1)
            op = 'global_store_short_d16_hi' if j & 1 else 'global_store_short'
            a(f'{op} {vr(G_T2)}, v{r}, s[16:17] offset:{32*mt}')
        if j < 7:
            a(f'v_add_u32 {vr(G_T2)}, 4096, {vr(G_T2)}')
    gemm_main(a, 4, young=16)
    ws_ptr(a, 16, 6, WS_Q)
    a(f's_mov_b32 s93, {f32bits(QSCALE)}')
    vo = G_T0
    a(f'v_lshlrev_b32 {vr(vo)}, 5, {vr(G_W)}')
    a(f'v_lshl_add_u32 {vr(vo)}, {vr(G_G)}, 2, {vr(vo)}')
    a(f'v_add_u32 {vr(vo)}, s12, {vr(vo)}')
    a(f'v_mul_lo_u32 {vr(vo)}, {vr(vo)}, s91')
    a(f'v_add_u32 {vr(G_T1)}, s13, {vr(G_I)}')
    a(f'v_lshl_add_u32 {vr(vo)}, {vr(G_T1)}, 1, {vr(vo)}')
    for r in range(16):
        a(f'v_mul_f32 {vr(G_ACC+r)}, s93, {vr(G_ACC+r)}')
    for r in range(0, 16, 2):
        a(f'v_cvt_pk_bf16_f32 {vr(G_ACC+r)}, {vr(G_ACC+r)}, {vr(G_ACC+r+1)}')
    for mt in range(2):
        for nt in range(2):
            for ii in (0, 2):
                r = 8*mt + 4*nt + ii
                a(f'global_store_short {vr(vo)}, {vr(G_ACC+r)}, s[16:17] offset:{ii*1152 + 32*nt}')
                a(f'global_store_short_d16_hi {vr(vo)}, {vr(G_ACC+r)}, s[16:17] offset:{(ii+1)*1152 + 32*nt}')
        if mt == 0:
            a(f'v_add_u32 {vr(vo)}, {16*1152}, {vr(vo)}')
    tl_end(a, 0); a('s_endpgm')

    a.label('K1_KV')
    load_ptr(a, 8, A_WK)
    load_ptr(a, 10, A_WV)
    load_ptr(a, 18, A_GW)
    a(f's_sub_u32 s3, s2, {N_KGEN+N_QP}')
    a('s_and_b32 s15, s3, 1')
    a('s_lshr_b32 s12, s3, 1')
    a('s_lshl_b32 s12, s12, 7')
    gemm_lane_setup(a)
    gemm_a_setup(a, 12)
    a('s_waitcnt lgkmcnt(0)')
    a('s_cmp_eq_u32 s15, 0')
    a('s_cselect_b32 s8, s8, s10')
    a('s_cselect_b32 s9, s9, s11')
    imgs = [16, 32]
    a(f'v_mov_b32 {vr(G_T3)}, s15')
    a(f'v_cmp_eq_u32 s[24:25], 0, {vr(G_T3)}')
    def w_loads(j, WR):
        a(f'v_add_u32 {vr(G_T0)}, {256*j}, v0')
        a(f'v_mul_u32_u24 {vr(G_T1)}, 36, {vr(G_T0)}')
        a(f'global_load_dwordx4 {vr(WR,4)}, {vr(G_T1)}, s[8:9]')
        a(f'global_load_dwordx4 {vr(WR+4,4)}, {vr(G_T1)}, s[8:9] offset:16')
        a(f'global_load_dword {vr(WR+8)}, {vr(G_T1)}, s[8:9] offset:32')
        a(f'v_lshlrev_b32 {vr(G_T2)}, 1, {vr(G_T0)}')
        a(f'global_load_ushort {vr(WR+9)}, {vr(G_T2)}, s[18:19]')
        for z in range(10, 16):
            a(f'v_mov_b32 {vr(WR+z)}, 0')
    def w_writes(j, WR):
        a(f'v_cndmask_b32 {vr(WR+9)}, 0, {vr(WR+9)}, s[24:25]')
        a(f'v_lshlrev_b32 {vr(G_T2)}, 6, v0')
        for z in range(4):
            a(f'ds_write_b128 {vr(G_T2)}, {vr(WR+4*z,4)} offset:{j*16384 + 16*z}')
    for ks in range(18):
        a_load(a, 4, ks)
    w_loads(0, 16); w_loads(1, 32)
    a('s_cmp_eq_u32 s89, 0')
    a('s_cbranch_scc0 K1_KV_N3')
    w_loads(2, G_FREE)
    a('s_waitcnt vmcnt(0)')
    w_writes(2, G_FREE)
    a.label('K1_KV_N3')
    a('s_waitcnt vmcnt(0)')
    w_writes(0, 16); w_writes(1, 32)
    gemm_tr_setup(a)
    a('s_waitcnt lgkmcnt(0)')
    a('s_barrier')
    a(f's_lshr_b32 s13, s12, 5')
    a(f'v_add_u32 {vr(G_T0)}, s13, {vr(G_W)}')
    a(f'v_lshrrev_b32 {vr(G_T1)}, 5, {vr(G_T0)}')
    a(f'v_and_b32 {vr(G_T0)}, 31, {vr(G_T0)}')
    a(f's_mov_b32 s14, {PH_BYTES}')
    a(f'v_mul_lo_u32 v13, {vr(G_T1)}, s14')
    a(f'v_mov_b32 v14, {vr(G_T0)}')
    ws_ptr(a, 16, 6, WS_KVF)
    a('s_cmp_eq_u32 s15, 1')
    a('s_cbranch_scc1 K1_KV_V')
    gemm_main(a, 4, swap=True)
    KM = G_FREE + 16
    a(f'v_max3_f32 v{KM}, abs({vr(G_ACC)}), abs({vr(G_ACC+1)}), abs({vr(G_ACC+2)})')
    a(f'v_max3_f32 v{KM}, v{KM}, abs({vr(G_ACC+3)}), abs({vr(G_ACC+8)})')
    a(f'v_max3_f32 v{KM}, v{KM}, abs({vr(G_ACC+9)}), abs({vr(G_ACC+10)})')
    a(f'v_max_f32 v{KM}, v{KM}, abs({vr(G_ACC+11)})')
    a(f'v_max3_f32 v{KM+1}, abs({vr(G_ACC+4)}), abs({vr(G_ACC+5)}), abs({vr(G_ACC+12)})')
    a(f'v_max_f32 v{KM+1}, v{KM+1}, abs({vr(G_ACC+13)})')
    a(f'v_cmp_eq_u32 vcc, 0, {vr(G_G)}')
    a('s_nop 1')
    a(f'v_cndmask_b32 v{KM+1}, 0, v{KM+1}, vcc')
    a(f'v_max_f32 v{KM}, v{KM}, v{KM+1}')
    for sh in (1, 2, 4, 8):
        a('s_nop 1')
        a(f'v_max_f32_dpp v{KM}, v{KM}, v{KM} row_ror:{sh} row_mask:0xf bank_mask:0xf')
    a('s_nop 1')
    a(f'v_readlane_b32 s26, v{KM}, 0')
    a(f'v_readlane_b32 s27, v{KM}, 16')
    a(f'v_readlane_b32 s28, v{KM}, 32')
    a(f'v_readlane_b32 s29, v{KM}, 48')
    a('s_nop 1')
    a(f'v_mov_b32 v{KM}, s26')
    a(f'v_max_f32 v{KM}, s27, v{KM}')
    a(f'v_max_f32 v{KM}, s28, v{KM}')
    a(f'v_max_f32 v{KM}, s29, v{KM}')
    ws_ptr(a, 26, 6, WS_KMAX)
    a(f'v_lshrrev_b32 v{KM+1}, 5, s12')
    a(f'v_add_u32 v{KM+1}, {vr(G_W)}, v{KM+1}')
    a(f'v_lshlrev_b32 v{KM+1}, 2, v{KM+1}')
    a(f'global_store_dword v{KM+1}, v{KM}, s[26:27]')
    a(f'v_lshl_add_u32 {vr(G_T2)}, v14, 10, v13')
    a(f'v_lshrrev_b32 {vr(G_T3)}, 1, {vr(G_G)}')
    a(f'v_lshl_add_u32 {vr(G_T2)}, {vr(G_T3)}, 9, {vr(G_T2)}')
    a(f'v_lshl_add_u32 {vr(G_T2)}, {vr(G_I)}, 4, {vr(G_T2)}')
    a(f'v_and_b32 {vr(G_T3)}, 1, {vr(G_G)}')
    a(f'v_lshl_add_u32 {vr(G_T2)}, {vr(G_T3)}, 3, {vr(G_T2)}')
    for kt in range(2):
        r = G_ACC + 8*kt
        a(f'v_cvt_pk_bf16_f32 v{r}, v{r}, v{r+1}')
        a(f'v_cvt_pk_bf16_f32 v{r+1}, v{r+2}, v{r+3}')
        a(f'global_store_dwordx2 {vr(G_T2)}, {vr(r,2)}, s[16:17] offset:{KF1_OFF + kt*256}')
    a(f'v_cmp_eq_u32 vcc, 0, {vr(G_G)}')
    a('s_and_saveexec_b64 s[20:21], vcc')
    a(f'v_lshl_add_u32 {vr(G_T2)}, v14, 8, v13')
    a(f'v_lshl_add_u32 {vr(G_T2)}, {vr(G_I)}, 3, {vr(G_T2)}')
    a(f'v_add_u32 {vr(G_T2)}, {KF2_OFF}, {vr(G_T2)}')
    ws_ptr(a, 18, 6, WS_G)
    a(f'v_lshl_add_u32 {vr(G_T1)}, {vr(G_W)}, 5, {vr(G_I)}')
    a(f'v_add_u32 {vr(G_T1)}, s12, {vr(G_T1)}')
    a(f'v_lshlrev_b32 {vr(G_T1)}, 2, {vr(G_T1)}')
    for nt in range(2):
        r = G_ACC + 4 + 8*nt
        a(f'v_cvt_pk_bf16_f32 v{r}, v{r}, v{r+1}')
        a(f'v_mov_b32 v{r+1}, 0x3f80')
        a(f'global_store_dwordx2 {vr(G_T2)}, {vr(r,2)}, s[16:17] offset:{nt*128}')
        bf16r(a, r+2, G_T3)
        a(f'v_mul_f32 v{r+3}, {f32bits(-LOG2E)}, v{r+2}')
        a(f'v_exp_f32 v{r+3}, v{r+3}')
        a('s_nop 0')
        a(f'v_add_f32 v{r+3}, 1.0, v{r+3}')
        a(f'v_rcp_f32 v{r+3}, v{r+3}')
        a('s_nop 0')
        bf16r(a, r+3, G_T3)
        a(f'global_store_dword {vr(G_T1)}, v{r+3}, s[18:19] offset:{nt*64}')
    tl_end(a, 0); a('s_endpgm')
    a.label('K1_KV_V')
    gemm_main(a, 4, swap=False)
    a(f'v_mul_lo_u32 {vr(G_T2)}, v14, s91')
    a(f'v_add_u32 {vr(G_T2)}, v13, {vr(G_T2)}')
    a(f'v_and_b32 {vr(G_T3)}, 1, {vr(G_G)}')
    a(f'v_mul_u32_u24 {vr(G_T3)}, 18, {vr(G_T3)}')
    a(f'v_add_u32 {vr(G_T3)}, {vr(G_I)}, {vr(G_T3)}')
    a(f'v_lshl_add_u32 {vr(G_T2)}, {vr(G_T3)}, 4, {vr(G_T2)}')
    a(f'v_lshrrev_b32 {vr(G_T3)}, 1, {vr(G_G)}')
    a(f'v_lshl_add_u32 {vr(G_T2)}, {vr(G_T3)}, 3, {vr(G_T2)}')
    a(f'v_add_u32 {vr(G_T2)}, {VF_OFF}, {vr(G_T2)}')
    for nt in range(2):
        if nt == 1:
            a(f'v_cmp_gt_u32 vcc, 2, {vr(G_I)}')
            a('s_and_saveexec_b64 s[20:21], vcc')
        for mt in range(2):
            r = G_ACC + 8*mt + 4*nt
            a(f'v_cvt_pk_bf16_f32 v{r}, v{r}, v{r+1}')
            a(f'v_cvt_pk_bf16_f32 v{r+1}, v{r+2}, v{r+3}')
            a(f'global_store_dwordx2 {vr(G_T2)}, {vr(r,2)}, s[16:17] offset:{mt*576 + nt*256}')
    tl_end(a, 0); a('s_endpgm')

    a.label('K1_KGEN')
    load_ptr(a, 8, A_LOGA); load_ptr(a, 10, A_AIM); load_ptr(a, 12, A_CRE); load_ptr(a, 14, A_CIM); load_ptr(a, 16, A_LOGDT)
    L, W = 1, 2
    VDT, A2, BB, CRr, CIi = 4, 5, 6, 7, 8
    ZR, ZI = 9, 10
    FR, FI = 11, 12
    XR, XI = 13, 14
    YR, YI = 15, 16
    VWA, VWB = 17, 18
    T = 20
    a(f'v_and_b32 v{L}, 63, v0')
    a(f'v_lshrrev_b32 v{W}, 6, v0')
    a('s_nop 1')
    a(f'v_readfirstlane_b32 s89, v{W}')
    a(f'v_and_b32 v{T}, 1, v{W}')
    a(f'v_lshl_add_u32 v{T}, v{T}, 6, v{L}')
    a(f'v_lshlrev_b32 v{T+1}, 1, v{T}')
    a('s_mul_i32 s30, s2, 3')
    a('s_lshl_b32 s3, s30, 8')
    a(f'v_add_u32 v{T+1}, s3, v{T+1}')
    a('s_lshl_b32 s3, s30, 1')
    a(f'v_mov_b32 v{T+2}, s3')
    a('s_waitcnt lgkmcnt(0)')
    PR = 120
    for cc in range(3):
        a(f'global_load_ushort v{PR+5*cc}, v{T+2}, s[16:17] offset:{2*cc}')
        a(f'global_load_ushort v{PR+5*cc+1}, v{T+1}, s[8:9] offset:{256*cc}')
        a(f'global_load_ushort v{PR+5*cc+2}, v{T+1}, s[10:11] offset:{256*cc}')
        a(f'global_load_ushort v{PR+5*cc+3}, v{T+1}, s[12:13] offset:{256*cc}')
        a(f'global_load_ushort v{PR+5*cc+4}, v{T+1}, s[14:15] offset:{256*cc}')
    NB4 = 119
    a(f'v_lshlrev_b32 v{NB4}, 2, v{T}')
    a(f'v_lshlrev_b32 v{T+3}, 2, v{T}')
    a(f's_mov_b32 s20, {f32bits(LOG2E)}')
    a(f's_mov_b32 s21, {f32bits(1.0/(2*math.pi))}')
    a('s_lshr_b32 s22, s89, 1')
    for cc in range(3):
        a(f's_add_u32 s31, s30, {cc}')
        a(f's_waitcnt vmcnt({0})')
        for k5, v in enumerate((VDT, A2, BB, CRr, CIi)):
            a(f'v_lshlrev_b32 v{v}, 16, v{PR+5*cc+k5}')
        a(f'v_mov_b32 v{T+3}, v{NB4}')
        a(f'v_mul_f32 v{VDT}, s20, v{VDT}')
        a(f'v_mul_f32 v{A2}, s20, v{A2}')
        a(f'v_exp_f32 v{VDT}, v{VDT}')
        a(f'v_exp_f32 v{A2}, v{A2}')
        a('s_nop 0')
        bf16r(a, VDT, T)
        bf16r(a, A2, T)
        a(f'v_mul_f32 v{A2}, v{VDT}, v{A2}')
        a(f'v_mul_f32 v{BB}, v{VDT}, v{BB}')
        a(f'v_mul_f32 v{A2}, s20, v{A2}')
        a(f'v_mul_f32 v{BB}, s21, v{BB}')
        a(f'v_mul_f32 v{CRr}, v{VDT}, v{CRr}')
        a(f'v_mul_f32 v{CIi}, v{VDT}, v{CIi}')
        a(f'v_add_f32 v{CRr}, v{CRr}, v{CRr}')
        a(f'v_add_f32 v{CIi}, v{CIi}, v{CIi}')
        def zpow(dr, di, p, conj):
            a(f'v_mul_f32 v{T}, {f32bits(-float(p))}, v{A2}')
            a(f'v_mul_f32 v{T+1}, {f32bits(float(p))}, v{BB}')
            a(f'v_exp_f32 v{T}, v{T}')
            a(f'v_fract_f32 v{T+1}, v{T+1}')
            a(f'v_cos_f32 v{dr}, v{T+1}')
            a(f'v_sin_f32 v{di}, v{T+1}')
            a('s_nop 0')
            a(f'v_mul_f32 v{dr}, v{T}, v{dr}')
            if conj: a(f'v_mul_f32 v{di}, -v{T}, v{di}')
            else:    a(f'v_mul_f32 v{di}, v{T}, v{di}')
        def cmul_conjC(dr, di, zr, zi):
            a(f'v_mul_f32 v{dr}, v{CRr}, v{zr}')
            a(f'v_mul_f32 v{di}, v{CRr}, v{zi}')
            a(f'v_fma_f32 v{dr}, v{CIi}, v{zi}, v{dr}')
            a(f'v_fma_f32 v{di}, -v{CIi}, v{zr}, v{di}')
        zpow(ZR, ZI, 32, True)
        FA_LDS, FB_LDS = 0, 64*KG_ROW
        a('s_cmp_eq_u32 s22, 0')
        a(f's_cbranch_scc0 K1_KG_P1_{cc}')
        zpow(FR, FI, 1, False)
        a(f'v_mov_b32 v{XR}, v{CRr}')
        a(f'v_sub_f32 v{XI}, 0, v{CIi}')
        a(f'v_mov_b32 v{YR}, v{FR}')
        a(f'v_mov_b32 v{YI}, v{FI}')
        a(f'v_mov_b32 v{VWA}, v{T+3}')
        a(f'v_add_u32 v{VWB}, {FB_LDS}, v{T+3}')
        def step(sr_, si_, mr, mi, t0):
            a(f'v_mul_f32 v{t0}, v{sr_}, v{mr}')
            a(f'v_mul_f32 v{t0+1}, v{sr_}, v{mi}')
            a(f'v_fma_f32 v{t0}, -v{si_}, v{mi}, v{t0}')
            a(f'v_fma_f32 v{si_}, v{si_}, v{mr}, v{t0+1}')
            a(f'v_mov_b32 v{sr_}, v{t0}')
        for k in range(32):
            if k < 16:
                a(f'v_cvt_pk_bf16_f32 v{T+4}, v{XR}, v{XI}')
                a(f'ds_write_b32 v{VWA}, v{T+4} offset:{k*KG_ROW}')
            a(f'v_cvt_pk_bf16_f32 v{T+5}, v{YR}, v{YI}')
            a(f'ds_write_b32 v{VWB}, v{T+5} offset:{k*KG_ROW}')
            if k < 15: step(XR, XI, ZR, ZI, T+6)
            if k < 31: step(YR, YI, FR, FI, T+8)
        a(f's_branch K1_KG_J_{cc}')
        a.label(f'K1_KG_P1_{cc}')
        zpow(FR, FI, 512, True)
        cmul_conjC(XR, XI, FR, FI)
        zpow(FR, FI, 1280, True)
        cmul_conjC(YR, YI, FR, FI)
        a(f'v_add_u32 v{VWA}, {16*KG_ROW}, v{T+3}')
        a(f'v_add_u32 v{VWB}, {40*KG_ROW}, v{T+3}')
        for k in range(24):
            a(f'v_cvt_pk_bf16_f32 v{T+4}, v{XR}, v{XI}')
            a(f'ds_write_b32 v{VWA}, v{T+4} offset:{k*KG_ROW}')
            a(f'v_cvt_pk_bf16_f32 v{T+5}, v{YR}, v{YI}')
            a(f'ds_write_b32 v{VWB}, v{T+5} offset:{k*KG_ROW}')
            if k < 23:
                step(XR, XI, ZR, ZI, T+6)
                step(YR, YI, ZR, ZI, T+8)
        a.label(f'K1_KG_J_{cc}')
        a('s_waitcnt lgkmcnt(0)')
        a('s_barrier')
        H, I = 3, 19
        D = 32
        FAr, FBr = 48, 80
        a(f'v_lshrrev_b32 v{H}, 5, v{L}')
        a(f'v_and_b32 v{I}, 31, v{L}')
        a(f's_movk_i32 s3, {KG_ROW}')
        a(f'v_and_b32 v{T}, 1, v{W}')
        a(f'v_lshl_add_u32 v{T}, v{T}, 5, v{I}')
        a(f'v_mul_lo_u32 v{T}, v{T}, s3')
        a(f'v_lshl_add_u32 v{T}, v{H}, 4, v{T}')
        a(f's_lshl_b32 s23, s22, 8')
        a(f'v_add_u32 v{T}, s23, v{T}')
        a(f'v_mul_lo_u32 v{T+1}, v{I}, s3')
        a(f'v_lshl_add_u32 v{T+1}, v{H}, 4, v{T+1}')
        a(f'v_add_u32 v{T+1}, s23, v{T+1}')
        a(f'v_add_u32 v{T+1}, {FB_LDS}, v{T+1}')
        for s in range(8):
            a(f'ds_read_b128 {vr(FAr+4*s,4)}, v{T} offset:{32*s}')
            a(f'ds_read_b128 {vr(FBr+4*s,4)}, v{T+1} offset:{32*s}')
        for s in range(8):
            a(f's_waitcnt lgkmcnt({min(15, 2*(7-s))})')
            C = vr(D,16) if s else '0'
            a(f'v_mfma_f32_32x32x16_bf16 {vr(D,16)}, {vr(FAr+4*s,4)}, {vr(FBr+4*s,4)}, {C}')
        a('s_barrier')
        a(f's_mul_i32 s24, s22, 8208')
        a(f'v_lshlrev_b32 v{T}, 9, v{H}')
        a(f'v_lshl_add_u32 v{T}, v{I}, 2, v{T}')
        a(f'v_add_u32 v{T}, s24, v{T}')
        a('s_and_b32 s25, s89, 1')
        a('s_lshl_b32 s25, s25, 12')
        a(f'v_add_u32 v{T}, s25, v{T}')
        a('s_nop 7')
        for r in range(16):
            q, ii = divmod(r, 4)
            a(f'ds_write_b32 v{T}, v{D+r} offset:{4 + 1024*q + 128*ii}')
        a('s_cmp_eq_u32 s22, 0')
        a(f's_cbranch_scc0 K1_KG_NS_{cc}')
        a(f'v_mov_b32 v{T+2}, v{CRr}')
        for sh in (1, 2, 4, 8):
            a('s_nop 1')
            a(f'v_add_f32_dpp v{T+2}, v{T+2}, v{T+2} row_ror:{sh} row_mask:0xf bank_mask:0xf')
        a('s_nop 1')
        a(f'v_readlane_b32 s26, v{T+2}, 0')
        a(f'v_readlane_b32 s27, v{T+2}, 16')
        a(f'v_readlane_b32 s28, v{T+2}, 32')
        a(f'v_readlane_b32 s29, v{T+2}, 48')
        a('s_nop 1')
        a(f'v_mov_b32 v{T+2}, s26')
        a(f'v_add_f32 v{T+2}, s27, v{T+2}')
        a(f'v_add_f32 v{T+2}, s28, v{T+2}')
        a(f'v_add_f32 v{T+2}, s29, v{T+2}')
        a('s_and_b32 s25, s89, 1')
        a('s_mul_i32 s25, s25, 8208')
        a(f'v_mov_b32 v{T+3}, s25')
        a(f'ds_write_b32 v{T+3}, v{T+2}')
        a.label(f'K1_KG_NS_{cc}')
        a('s_waitcnt lgkmcnt(0)')
        a('s_barrier')
        G = 24
        a(f'v_lshlrev_b32 v{T}, 3, v0')
        a(f'v_sub_u32 v{T+1}, 2047, v{T}')
        for e in range(9):
            a(f'v_subrev_u32 v{G+e}, {e}, v{T+1}')
        a(f'v_cmp_gt_i32 vcc, 0, v{G+8}')
        a(f'v_max_i32 v{G+8}, 0, v{G+8}')
        for e in range(9):
            a(f'v_cvt_f32_u32 v{G+e}, v{G+e}')
        for e in range(9):
            bf16r(a, G+e, T+2)
        for e in range(9):
            a(f'v_cvt_u32_f32 v{G+e}, v{G+e}')
            a(f'v_lshlrev_b32 v{G+e}, 2, v{G+e}')
        V = 40
        for e in range(9):
            a(f'ds_read_b32 v{V+2*e}, v{G+e}')
            a(f'ds_read_b32 v{V+2*e+1}, v{G+e} offset:8208')
        a('s_waitcnt lgkmcnt(0)')
        for e in range(9):
            a(f'v_add_f32 v{V+2*e}, v{V+2*e}, v{V+2*e+1}')
        a(f'v_cndmask_b32 v{V+16}, v{V+16}, 0, vcc')
        for e in range(0, 8, 2):
            a(f'v_cvt_pk_bf16_f32 v{60+e//2}, v{V+2*e}, v{V+2*(e+1)}')
            a(f'v_cvt_pk_bf16_f32 v{64+e//2}, v{V+2*(e+1)}, v{V+2*(e+2)}')
        ws_ptr(a, 16, 6, WS_KT)
        a(f's_mul_i32 s3, s31, {KT_ROW}')
        a(f'v_lshlrev_b32 v{T+1}, 4, v0')
        a(f'v_add_u32 v{T+1}, s3, v{T+1}')
        a(f'global_store_dwordx4 v{T+1}, v[60:63], s[16:17]')
        a(f'v_add_u32 v{T+2}, {KT_HALF}, v{T+1}')
        a(f'global_store_dwordx4 v{T+2}, v[64:67], s[16:17]')
        a(f'v_cmp_gt_u32 vcc, 8, v0')
        a('s_and_saveexec_b64 s[32:33], vcc')
        a(f's_cbranch_execz K1_KG_E_{cc}')
        for i in range(4):
            a(f'v_mov_b32 v{68+i}, 0')
        a(f'v_add_u32 v{T+1}, 4096, v{T+1}')
        a(f'global_store_dwordx4 v{T+1}, v[68:71], s[16:17]')
        a(f'v_add_u32 v{T+2}, 4096, v{T+2}')
        a(f'global_store_dwordx4 v{T+2}, v[68:71], s[16:17]')
        a.label(f'K1_KG_E_{cc}')
        a('s_mov_b64 exec, s[32:33]')
        a('s_barrier')
    tl_end(a, 0); a('s_endpgm')

K2_GRID = 256
K2_THREADS = 704
CS = 4256
CONV_LDS0 = PH_USED
NCP = 4
CONV_SZ = NCP*CS + 2048 + 4096
K2_CNT = PH_USED + 3*CONV_SZ
K2_LDS = K2_CNT + 16
THR = 8.0

def gen_k2(a):
    kernel_header(a, 'attn_kernel')
    tl_start(a)
    stamp(a, 0)
    a('s_movk_i32 s90, 0x7fff')
    a(f's_cmp_ge_u32 s2, {K2_GRID}')
    a('s_cbranch_scc1 K2_END')
    load_ptr(a, 6, A_WS)
    load_ptr(a, 4, A_U)
    a('v_lshrrev_b32 v1, 6, v0')
    a('s_nop 0')
    a('v_readfirstlane_b32 s3, v1')
    a('s_nop 3')
    a('s_cmp_ge_u32 s3, 8')
    a('s_cbranch_scc1 K2_CONV')
    a('s_setprio 3')
    L, H, I = 1, 2, 3
    VK1, VK2, VV = 4, 5, 6
    VST, VGO = 7, 8
    VM, VMX, T0, T1, T2, T3 = 9, 10, 11, 12, 13, 14
    VBND = 152
    Q1, Q2 = 16, 20
    P = 24
    S = [32, 48]
    O = 64
    KA = [80, 84]; KB = [88, 92]; VA = [96, 104]
    STG = 112
    a(f'v_and_b32 v{L}, 63, v0')
    a(f'v_lshrrev_b32 v{H}, 5, v{L}')
    a(f'v_and_b32 v{I}, 31, v{L}')
    a('s_waitcnt lgkmcnt(0)')
    ws_ptr(a, 8, 6, WS_KVF)
    ws_ptr(a, 10, 6, WS_Q)
    ws_ptr(a, 12, 6, WS_O)
    a(f'v_lshlrev_b32 v{VST}, 4, v0')
    a(f'v_mov_b32 v{VGO}, v{VST}')
    def stage_loads():
        for j in range(10):
            if j == 9:
                a('s_cmp_lt_u32 s3, 4')
                lab = f'K2_SL{stage_loads.n}'
                a(f's_cbranch_scc0 {lab}')
            a(f'global_load_dwordx4 {vr(STG+4*j,4)}, v{VGO}, s[8:9]')
            if j == 9:
                a.label(lab)
                stage_loads.n += 1
            a(f'v_add_u32 v{VGO}, 8192, v{VGO}')
    stage_loads.n = 0
    def stage_writes(extra):
        a(f's_waitcnt vmcnt({extra})')
        for j in range(10):
            if j == 9:
                a('s_cmp_lt_u32 s3, 4')
                lab = f'K2_SW{stage_writes.n}'
                a(f's_cbranch_scc0 {lab}')
            a(f'ds_write_b128 v{VST}, {vr(STG+4*j,4)} offset:{j*8192}' if j < 8 else
              f'ds_write_b128 v{T3}, {vr(STG+4*j,4)} offset:{(j-8)*8192}')
            if j == 9:
                a.label(lab)
                stage_writes.n += 1
    stage_writes.n = 0
    a(f'v_add_u32 v{T3}, 65536, v{VST}')
    stage_loads()
    a('s_lshl_b32 s14, s2, 3')
    a('s_add_u32 s14, s14, s3')
    a('s_mul_i32 s14, s14, 1152')
    a(f'v_mul_u32_u24 v{T0}, 36, v{I}')
    a(f'v_add_u32 v{T0}, s14, v{T0}')
    a(f'v_lshl_add_u32 v{T1}, v{H}, 4, v{T0}')
    a(f'global_load_dwordx4 {vr(Q1,4)}, v{T1}, s[10:11]')
    a(f'global_load_dword v{Q2}, v{T0}, s[10:11] offset:32')
    a(f'v_mov_b32 v{T2}, v{T0}')
    ws_ptr(a, 24, 6, WS_KMAX)
    a(f'v_lshlrev_b32 v{T0}, 2, v{L}')
    a(f'global_load_dword v{VBND}, v{T0}, s[24:25]')
    a(f'v_mov_b32 v{Q2+1}, 0')
    a(f'v_mov_b32 v{Q2+2}, 0')
    a(f'v_mov_b32 v{Q2+3}, 0')
    a('s_mov_b32 s16, -1')
    a('s_mov_b32 s17, 0')
    a('s_mov_b32 s18, 0x3ffff')
    a('s_mov_b32 s19, 0x3ffff')
    a(f'v_lshlrev_b32 v{VK1}, 4, v{L}')
    a(f'v_lshlrev_b32 v{VK2}, 3, v{I}')
    a(f'v_add_u32 v{VK2}, {KF2_OFF}, v{VK2}')
    a(f'v_mul_u32_u24 v{VV}, 18, v{H}')
    a(f'v_add_u32 v{VV}, v{I}, v{VV}')
    a(f'v_lshlrev_b32 v{VV}, 4, v{VV}')
    a(f'v_add_u32 v{VV}, {VF_OFF}, v{VV}')
    for b in range(2):
        for z in range(4): a(f'v_mov_b32 v{KB[b]+z}, 0')
    a(f'v_cmp_eq_u32 vcc, 18, v{I}')
    a(f'v_mov_b32 v{T0}, 0x3f803f80')
    a('s_nop 1')
    a(f'v_cndmask_b32 v{T0}, 0, v{T0}, vcc')
    for b in range(2):
        for i in range(8):
            a(f'v_mov_b32 v{VA[b]+i}, v{T0}')
    for i in range(16):
        a(f'v_mov_b32 v{O+i}, 0')
    a(f'v_mov_b32 v{VM}, 0')
    a(f's_mov_b32 s20, 0xff7fffff')
    stage_writes(0)
    a(f'v_mov_b32 v15, {K2_CNT}')
    a(f'v_mov_b32 v{T0}, 0')
    a(f'ds_write_b32 v15, v{T0}')
    a(f'v_cmp_eq_u32 vcc, 0, v{H}')
    a('s_nop 1')
    a(f'v_cndmask_b32 v{Q2}, 0, v{Q2}, vcc')
    for sh in (1, 2, 4, 8):
        a('s_nop 1')
        a(f'v_max_f32_dpp v{VBND}, v{VBND}, v{VBND} row_ror:{sh} row_mask:0xf bank_mask:0xf')
    a('s_nop 1')
    a(f'v_readlane_b32 s26, v{VBND}, 0')
    a(f'v_readlane_b32 s27, v{VBND}, 16')
    a(f'v_readlane_b32 s28, v{VBND}, 32')
    a(f'v_readlane_b32 s29, v{VBND}, 48')
    a('s_nop 1')
    a(f'v_mov_b32 v{VBND}, s26')
    a(f'v_max_f32 v{VBND}, s27, v{VBND}')
    a(f'v_max_f32 v{VBND}, s28, v{VBND}')
    a(f'v_max_f32 v{VBND}, s29, v{VBND}')
    a(f'v_mov_b32 v{VBND+1}, 0')
    for r in (Q1, Q1+1, Q1+2, Q1+3, Q2):
        a(f'v_lshlrev_b32 v{T0}, 16, v{r}')
        a(f'v_and_b32 v{T1}, 0xffff0000, v{r}')
        a(f'v_add_f32 v{VBND+1}, abs(v{T0}), v{VBND+1}')
        a(f'v_add_f32 v{VBND+1}, abs(v{T1}), v{VBND+1}')
    a(f'v_mov_b32 v{T0}, v{VBND+1}')
    a(f'v_mov_b32 v{T1}, v{VBND+1}')
    a('s_nop 1')
    a(f'v_permlane32_swap_b32 v{T0}, v{T1}')
    a('s_nop 1')
    a(f'v_add_f32 v{T0}, v{T0}, v{T1}')
    a(f'v_mul_f32 v{VBND}, v{VBND}, v{T0}')
    a(f'v_mul_f32 v{VBND}, 0x3f840000, v{VBND}')
    a('s_waitcnt lgkmcnt(0)')
    a('s_barrier')
    stage_loads()
    stamp(a, 1)

    def k_reads(b, off):
        a(f'ds_read_b128 {vr(KA[b],4)}, v{VK1} offset:{off*1024}')
        a('s_mov_b64 exec, s[16:17]')
        a(f'ds_read_b64 {vr(KB[b],2)}, v{VK2} offset:{off*256}')
        a('s_mov_b64 exec, -1')
    def v_reads(b, off):
        a('s_mov_b64 exec, s[18:19]')
        a(f'ds_read_b128 {vr(VA[b],4)}, v{VV} offset:{off*1152}')
        a(f'ds_read_b128 {vr(VA[b]+4,4)}, v{VV} offset:{off*1152+576}')
        a('s_mov_b64 exec, -1')
    def qk(b, sb):
        a(f'v_mfma_f32_32x32x16_bf16 {vr(S[sb],16)}, {vr(KA[b],4)}, {vr(Q1,4)}, 0')
        a(f'v_mfma_f32_32x32x16_bf16 {vr(S[sb],16)}, {vr(KB[b],4)}, {vr(Q2,4)}, {vr(S[sb],16)}')

    def tile_body(ph, b, safe):
        nb = b ^ 1
        Sb = S[b]
        a('s_waitcnt lgkmcnt(2)')
        a(f'v_mfma_f32_32x32x16_bf16 {vr(S[nb],16)}, {vr(KA[nb],4)}, {vr(Q1,4)}, 0')
        if safe:
            a(f'v_max3_f32 v{VMX}, v{Sb}, v{Sb+1}, v{Sb+2}')
            for i in range(3, 9, 2):
                a(f'v_max3_f32 v{VMX}, v{VMX}, v{Sb+i}, v{Sb+i+1}')
            a(f'v_mfma_f32_32x32x16_bf16 {vr(S[nb],16)}, {vr(KB[nb],4)}, {vr(Q2,4)}, {vr(S[nb],16)}')
            for i in range(9, 15, 2):
                a(f'v_max3_f32 v{VMX}, v{VMX}, v{Sb+i}, v{Sb+i+1}')
            a(f'v_max_f32 v{VMX}, v{VMX}, v{Sb+15}')
            a(f'v_cmp_lt_f32 vcc, s20, v{VMX}')
            a(f's_cbranch_vccnz K2_SLOW_{ph}_{b}')
            a.label(f'K2_BACK_{ph}_{b}')
            for i in range(8):
                a(f'v_exp_f32 v{Sb+i}, v{Sb+i}')
        else:
            for i in range(4):
                a(f'v_exp_f32 v{Sb+i}, v{Sb+i}')
            a(f'v_mfma_f32_32x32x16_bf16 {vr(S[nb],16)}, {vr(KB[nb],4)}, {vr(Q2,4)}, {vr(S[nb],16)}')
            for i in range(4, 8):
                a(f'v_exp_f32 v{Sb+i}, v{Sb+i}')
        k_reads(b, b + 2)
        v_reads(nb, b + 1)
        for i in range(4):
            a(f'v_cvt_pk_bf16_f32 v{P+i}, v{Sb+2*i}, v{Sb+2*i+1}')
        for i in range(8, 12):
            a(f'v_exp_f32 v{Sb+i}, v{Sb+i}')
        a('s_waitcnt lgkmcnt(4)')
        a(f'v_mfma_f32_32x32x16_bf16 {vr(O,16)}, {vr(VA[b],4)}, {vr(P,4)}, {vr(O,16)}')
        for i in range(12, 16):
            a(f'v_exp_f32 v{Sb+i}, v{Sb+i}')
        a('s_nop 0')
        for i in range(4, 8):
            a(f'v_cvt_pk_bf16_f32 v{P+i}, v{Sb+2*i}, v{Sb+2*i+1}')
        a('s_nop 1')
        a(f'v_mfma_f32_32x32x16_bf16 {vr(O,16)}, {vr(VA[b]+4,4)}, {vr(P+4,4)}, {vr(O,16)}')
    def loop_tail():
        a(f'v_add_u32 v{VK1}, 2048, v{VK1}')
        a(f'v_add_u32 v{VK2}, 512, v{VK2}')
        a(f'v_add_u32 v{VV}, 2304, v{VV}')
        a('s_add_u32 s21, s21, 1')
        a('s_cmp_lt_u32 s21, 16')
    a('s_mov_b32 s23, 0')
    for phase in range(2):
        ph = f'P{phase}'
        k_reads(0, 0)
        k_reads(1, 1)
        v_reads(0, 0)
        a('s_waitcnt lgkmcnt(4)')
        qk(0, 0)
        a('s_nop 15')
        a('s_mov_b32 s21, 0')
        a('s_cmp_eq_u32 s23, 1')
        a(f's_cbranch_scc1 K2_FLOOP_{ph}')
        a.label(f'K2_LOOP_{ph}')
        for b in range(2):
            tile_body(ph, b, True)
        a(f'v_sub_f32 v{T0}, v{VBND}, v{VM}')
        a(f'v_cmp_nle_f32 vcc, v{T0}, 0x42700000' if False else f'v_cmp_lt_f32 vcc, 0x42700000, v{T0}')
        a(f'v_cmp_u_f32 s[26:27], v{T0}, v{T0}')
        a('s_or_b64 vcc, vcc, s[26:27]')
        a('s_cmp_eq_u64 vcc, 0')
        a('s_cselect_b32 s23, 1, 0')
        loop_tail()
        a(f's_cbranch_scc0 K2_LX_{ph}')
        a('s_cmp_eq_u32 s23, 1')
        a(f's_cbranch_scc0 K2_LOOP_{ph}')
        a.label(f'K2_FLOOP_{ph}')
        for b in range(2):
            tile_body(ph, b, False)
        loop_tail()
        a(f's_cbranch_scc1 K2_FLOOP_{ph}')
        a.label(f'K2_LX_{ph}')
        stamp(a, 2+2*phase)
        if phase == 0:
            def lds_sync(k):
                a('s_waitcnt lgkmcnt(0)')
                a(f'v_mov_b32 v{T0}, 1')
                a(f'ds_add_u32 v15, v{T0}')
                a.label(f'K2_SPIN{k}')
                a(f'ds_read_b32 v{T0}, v15')
                a('s_waitcnt lgkmcnt(0)')
                a(f'v_readfirstlane_b32 s22, v{T0}')
                a(f's_cmp_ge_u32 s22, {512*k}')
                a(f's_cbranch_scc1 K2_SPINX{k}')
                a('s_sleep 1')
                a(f's_branch K2_SPIN{k}')
                a.label(f'K2_SPINX{k}')
            lds_sync(1)
            stage_writes(0)
            a(f'v_subrev_u32 v{VK1}, {16*2048}, v{VK1}')
            a(f'v_subrev_u32 v{VK2}, {16*512}, v{VK2}')
            a(f'v_subrev_u32 v{VV}, {16*2304}, v{VV}')
            lds_sync(2)
            stamp(a, 3)
    a('s_branch K2_FIN')
    for phase in range(2):
        ph = f'P{phase}'
        for b in range(2):
            nb = b ^ 1
            Sb, Sn = S[b], S[nb]
            a.label(f'K2_SLOW_{ph}_{b}')
            a(f'v_mov_b32 v{T0}, v{VMX}')
            a(f'v_mov_b32 v{T1}, v{VMX}')
            a('s_nop 1')
            a(f'v_permlane32_swap_b32 v{T0}, v{T1}')
            a('s_nop 1')
            a(f'v_max_f32 v{T0}, v{T0}, v{T1}')
            a('s_cmp_lt_i32 s20, 0')
            a(f's_cbranch_scc1 K2_SL1_{ph}_{b}')
            a(f'v_max_f32 v{T0}, 0, v{T0}')
            a.label(f'K2_SL1_{ph}_{b}')
            a(f's_mov_b32 s20, {f32bits(THR)}')
            a(f'v_add_f32 v{T1}, v{VM}, v{T0}')
            bf16r(a, T1, T0)
            a(f'v_sub_f32 v{T0}, v{T1}, v{VM}')
            a(f'v_mov_b32 v{VM}, v{T1}')
            a('s_nop 15')
            a('s_nop 7')
            for i in range(16):
                a(f'v_sub_f32 v{Sb+i}, v{Sb+i}, v{T0}')
                a(f'v_sub_f32 v{Sn+i}, v{Sn+i}, v{T0}')
            a(f'v_sub_f32 v{T0}, 0, v{T0}')
            a(f'v_exp_f32 v{T0}, v{T0}')
            a('s_nop 0')
            for i in range(16):
                a(f'v_mul_f32 v{O+i}, v{O+i}, v{T0}')
            a(f'v_xor_b32 v{T1}, 0x80000000, v{T1}')
            a(f'v_lshrrev_b32 v{T1}, 16, v{T1}')
            a('s_mov_b64 exec, s[16:17]')
            a(f'v_mov_b32 v{Q2+1}, v{T1}')
            a('s_mov_b64 exec, -1')
            a('s_nop 1')
            a(f's_branch K2_BACK_{ph}_{b}')
    a.label('K2_FIN')
    a('s_nop 15')
    a('s_nop 3')
    a(f'v_mov_b32 v{T0}, v{O+10}')
    a(f'v_mov_b32 v{T1}, v{O+10}')
    a('s_nop 1')
    a(f'v_permlane32_swap_b32 v{T0}, v{T1}')
    a('s_nop 1')
    a(f'v_rcp_f32 v{T0}, v{T0}')
    a('s_nop 0')
    for i in range(10):
        a(f'v_mul_f32 v{O+i}, v{O+i}, v{T0}')
    for i in range(0, 10, 2):
        a(f'v_cvt_pk_bf16_f32 v{P+i//2}, v{O+i}, v{O+i+1}')
    a(f'v_lshl_add_u32 v{T1}, v{H}, 3, v{T2}')
    a(f'global_store_dwordx2 v{T1}, {vr(P,2)}, s[12:13]')
    a(f'global_store_dwordx2 v{T1}, {vr(P+2,2)}, s[12:13] offset:16')
    a('s_mov_b64 exec, s[16:17]')
    a(f'global_store_dword v{T1}, v{P+4}, s[12:13] offset:32')
    if INSTR:
        a('s_memtime s[70:71]')
        a('s_cmp_lt_u32 s2, 1')
        a('s_cbranch_scc0 K2_END')
        a('s_mov_b32 s74, s3')
        dump_stamps(a, 5, None, None)
    tl_end(a, 1); a('s_endpgm')

    a.label('K2_CONV')
    a('s_sub_u32 s3, s3, 8')
    a('s_lshl_b32 s14, s3, 8')
    a('s_add_u32 s14, s14, s2')
    a('s_cmp_ge_u32 s14, 576')
    a('s_cbranch_scc1 K2_END2')
    L, H, I = 1, 2, 3
    VA_, VB_ = 4, 5
    a(f'v_and_b32 v{L}, 63, v0')
    a(f'v_lshrrev_b32 v{H}, 5, v{L}')
    a(f'v_and_b32 v{I}, 31, v{L}')
    a('s_waitcnt lgkmcnt(0)')
    ws_ptr(a, 8, 6, WS_KT)
    ws_ptr(a, 10, 6, WS_UT)
    ws_ptr(a, 12, 6, WS_YT)
    a(f's_mul_i32 s15, s3, {CONV_SZ}')
    a(f's_add_u32 s15, s15, {CONV_LDS0}')
    a(f'v_lshlrev_b32 v6, 4, v{L}')
    a('s_mov_b32 s24, 0x3ff')
    a('s_mov_b32 s25, 0')
    a(f's_mul_i32 s16, s14, {KT_ROW}')
    a(f'v_add_u32 v9, s15, v6')
    for c in range(NCP):
        b, off = c & 1, 4*(c >> 1)
        a(f's_add_u32 s17, s16, {b*KT_HALF + off}')
        a(f'v_add_u32 v7, s17, v6')
        for j in range(4):
            a(f'global_load_dwordx4 {vr(16 + c*20 + 4*j,4)}, v7, s[8:9] offset:{j*1024}')
        a(f'v_add_u32 v7, 4096, v7')
        a(f'global_load_dwordx4 {vr(16 + c*20 + 16,4)}, v7, s[8:9]')
    a('s_lshl_b32 s17, s14, 12')
    a('v_add_u32 v7, s17, v6')
    for j in range(4):
        a(f'global_load_dwordx4 {vr(96+4*j,4)}, v7, s[10:11] offset:{j*1024}')
    a('s_barrier')
    for i in range(4):
        a(f'v_mov_b32 v{112+i}, 0')
    a(f'ds_write_b128 v9, v[112:115] offset:{NCP*CS}')
    a(f'ds_write_b128 v9, v[112:115] offset:{NCP*CS+1024}')
    a('s_waitcnt vmcnt(0)')
    for c in range(NCP):
        for j in range(4):
            a(f'ds_write_b128 v9, {vr(16 + c*20 + 4*j,4)} offset:{c*CS + j*1024}')
    a('s_mov_b64 exec, s[24:25]')
    for c in range(NCP):
        a(f'ds_write_b128 v9, {vr(16 + c*20 + 16,4)} offset:{c*CS + 4096}')
    a('s_mov_b64 exec, -1')
    for j in range(4):
        a(f'ds_write_b128 v9, {vr(96+4*j,4)} offset:{NCP*CS + 2048 + j*1024}')
    a(f'v_lshlrev_b32 v10, 3, v{H}')
    a(f'v_sub_u32 v10, v10, v{I}')
    a(f'v_add_u32 v10, 2047, v10')
    a(f'v_and_b32 v11, 3, v10')
    a(f'v_sub_u32 v10, v10, v11')
    a(f'v_lshlrev_b32 v10, 1, v10')
    a(f's_movk_i32 s17, {CS}')
    a(f'v_mul_lo_u32 v11, v11, s17')
    a(f'v_add3_u32 v{VA_}, v10, v11, s15')
    a(f'v_lshlrev_b32 v{VB_}, 6, v{I}')
    a(f'v_lshl_add_u32 v{VB_}, v{H}, 4, v{VB_}')
    a(f'v_add_u32 v{VB_}, s15, v{VB_}')
    a(f'v_add_u32 v{VB_}, {NCP*CS + 2048}, v{VB_}')
    Y = [64, 80]
    FA = [16, 24]
    FBq = [32, 48]
    for i in range(32):
        a(f'v_mov_b32 v{64+i}, 0')
    a('s_waitcnt lgkmcnt(0)')
    def reads(buf, both):
        a(f'ds_read2_b64 {vr(FA[buf],4)}, v{VA_} offset0:0 offset1:1')
        a(f'ds_read2_b64 {vr(FA[buf]+4,4)}, v{VA_} offset0:4 offset1:5')
        if both:
            a(f'ds_read_b128 {vr(FBq[buf],4)}, v{VB_}')
            a(f'ds_read_b128 {vr(FBq[buf]+4,4)}, v{VB_} offset:32')
        a(f'ds_read_b128 {vr(FBq[buf]+8,4)}, v{VB_} offset:2048')
        a(f'ds_read_b128 {vr(FBq[buf]+12,4)}, v{VB_} offset:2080')
        a(f'v_subrev_u32 v{VA_}, 64, v{VA_}')
        a(f'v_subrev_u32 v{VB_}, 64, v{VB_}')
    def mfmas(buf, both):
        if both:
            a(f'v_mfma_f32_32x32x16_bf16 {vr(Y[0],16)}, {vr(FA[buf],4)}, {vr(FBq[buf],4)}, {vr(Y[0],16)}')
            a(f'v_mfma_f32_32x32x16_bf16 {vr(Y[0],16)}, {vr(FA[buf]+4,4)}, {vr(FBq[buf]+4,4)}, {vr(Y[0],16)}')
        a(f'v_mfma_f32_32x32x16_bf16 {vr(Y[1],16)}, {vr(FA[buf],4)}, {vr(FBq[buf]+8,4)}, {vr(Y[1],16)}')
        a(f'v_mfma_f32_32x32x16_bf16 {vr(Y[1],16)}, {vr(FA[buf]+4,4)}, {vr(FBq[buf]+12,4)}, {vr(Y[1],16)}')
    reads(0, True)
    a('s_mov_b32 s17, 0')
    a.label('K2_CV1')
    reads(1, True)
    a('s_waitcnt lgkmcnt(6)')
    mfmas(0, True)
    a('s_add_u32 s17, s17, 1')
    a('s_cmp_lt_u32 s17, 16')
    a('s_cbranch_scc0 K2_CV1X')
    reads(0, True)
    a('s_waitcnt lgkmcnt(6)')
    mfmas(1, True)
    a('s_branch K2_CV1')
    a.label('K2_CV1X')
    reads(0, False)
    a('s_waitcnt lgkmcnt(4)')
    mfmas(1, True)
    a('s_mov_b32 s17, 0')
    a.label('K2_CV2')
    reads(1, False)
    a('s_waitcnt lgkmcnt(4)')
    mfmas(0, False)
    a('s_add_u32 s17, s17, 1')
    a('s_cmp_lt_u32 s17, 16')
    a('s_cbranch_scc0 K2_CV2X')
    reads(0, False)
    a('s_waitcnt lgkmcnt(4)')
    mfmas(1, False)
    a('s_branch K2_CV2')
    a.label('K2_CV2X')
    a('s_waitcnt lgkmcnt(0)')
    mfmas(1, False)
    a('s_nop 15')
    a('s_nop 3')
    a(f'v_lshlrev_b32 v10, 6, v{I}')
    a(f'v_lshl_add_u32 v10, v{H}, 3, v10')
    a('s_lshl_b32 s16, s14, 12')
    a('v_add_u32 v10, s16, v10')
    for ct in range(2):
        for q in range(4):
            y = Y[ct] + 4*q
            a(f'v_cvt_pk_bf16_f32 v{y}, v{y}, v{y+1}')
            a(f'v_cvt_pk_bf16_f32 v{y+1}, v{y+2}, v{y+3}')
            a(f'global_store_dwordx2 v10, {vr(y,2)}, s[12:13] offset:{ct*2048 + q*16}')
    a.label('K2_END2')
    a('s_endpgm')
    a.label('K2_END')
    tl_end(a, 1); a('s_endpgm')

K3_GRID = 288
K3_LDS = 36864
def gen_k3(a):
    kernel_header(a, 'outp_kernel')
    tl_start(a)
    stamp(a, 0)
    a('s_movk_i32 s90, 0x7fff')
    a(f's_cmp_ge_u32 s2, {K3_GRID}')
    a('s_cbranch_scc1 K3_END')
    load_ptr(a, 4, A_U); load_ptr(a, 6, A_WS); load_ptr(a, 8, A_WO); load_ptr(a, 10, A_DSKIP); load_ptr(a, 18, A_OUT)
    a('s_and_b32 s15, s2, 7')
    a('s_lshr_b32 s3, s2, 3')
    div_const(a, 12, 13, 3, 18, 14)
    a('s_lshl_b32 s12, s12, 3')
    a('s_add_u32 s12, s12, s15')
    a('s_lshl_b32 s12, s12, 7')
    a('s_lshl_b32 s13, s13, 5')
    gemm_lane_setup(a)
    gemm_a_setup(a, 12)
    a('s_waitcnt lgkmcnt(0)')
    stamp(a, 1)
    ws_ptr(a, 16, 6, WS_O)
    ws_ptr(a, 20, 6, WS_G)
    ws_ptr(a, 22, 6, WS_YT)
    GV, YV, UV, DS = 192, 200, 208, 224
    R0, VO = 226, 227
    a(f'v_lshlrev_b32 v{R0}, 5, {vr(G_W)}')
    a(f'v_lshl_add_u32 v{R0}, {vr(G_G)}, 2, v{R0}')
    a(f'v_add_u32 v{R0}, s12, v{R0}')
    a(f'v_add_u32 {vr(G_T1)}, s13, {vr(G_I)}')
    a(f'v_mul_lo_u32 v{VO}, v{R0}, s91')
    a(f'v_lshl_add_u32 v{VO}, {vr(G_T1)}, 1, v{VO}')
    a(f'v_lshlrev_b32 {vr(G_T3)}, 12, {vr(G_T1)}')
    a(f'v_lshl_add_u32 {vr(G_T3)}, v{R0}, 1, {vr(G_T3)}')
    a(f'v_lshlrev_b32 {vr(G_T2)}, 1, {vr(G_T1)}')
    a(f'v_lshlrev_b32 v228, 2, v{R0}')
    a(f'v_add_u32 v229, 65536, {vr(G_T3)}')
    gemm_stage_b_dma(a, 8, 13)
    for ks in range(18):
        a_load(a, 16, ks)
    for mt in range(2):
        a(f'global_load_dwordx4 {vr(GV+4*mt,4)}, v228, s[20:21] offset:{mt*64}')
    for mt in range(2):
        a(f'global_load_dwordx2 {vr(YV+4*mt,2)}, {vr(G_T3)}, s[22:23] offset:{mt*32}')
        a(f'global_load_dwordx2 {vr(YV+4*mt+2,2)}, v229, s[22:23] offset:{mt*32}')
    a(f'global_load_ushort v{DS}, {vr(G_T2)}, s[10:11]')
    a(f'global_load_ushort v{DS+1}, {vr(G_T2)}, s[10:11] offset:32')
    a(f'v_mov_b32 {vr(G_T2)}, v{VO}')
    for mt in range(2):
        for nt in range(2):
            for ii in range(4):
                a(f'global_load_ushort v{UV+8*mt+4*nt+ii}, {vr(G_T2)}, s[4:5] offset:{ii*1152 + 32*nt}')
        if mt == 0:
            a(f'v_add_u32 {vr(G_T2)}, {16*1152}, {vr(G_T2)}')
    stamp(a, 2)
    gemm_tr_setup(a)
    a('s_waitcnt vmcnt(60)')
    a('s_barrier')
    stamp(a, 3)
    gemm_main(a, 16, young=24)
    stamp(a, 4)
    a('s_waitcnt vmcnt(0)')
    a(f'v_lshlrev_b32 v{DS}, 16, v{DS}')
    a(f'v_lshlrev_b32 v{DS+1}, 16, v{DS+1}')
    TT = G_ABUF
    for r in range(16):
        mt, nt, ii = r >> 3, (r >> 2) & 1, r & 3
        b = G_ACC + r
        bf16r(a, b, TT)
        u = UV + r
        a(f'v_lshlrev_b32 v{u}, 16, v{u}')
        a(f'v_mul_f32 v{u}, v{u}, v{DS+nt}')
        bf16r(a, u, TT)
        yreg = YV + 4*mt + 2*nt + (ii >> 1)
        if ii & 1: a(f'v_and_b32 v{TT+1}, 0xffff0000, v{yreg}')
        else:      a(f'v_lshlrev_b32 v{TT+1}, 16, v{yreg}')
        a(f'v_add_f32 v{u}, v{TT+1}, v{u}')
        bf16r(a, u, TT)
        g = GV + 4*mt + ii
        a(f'v_mul_f32 v{u}, v{g}, v{u}')
        bf16r(a, u, TT)
        a(f'v_sub_f32 v{TT+1}, 1.0, v{g}')
        bf16r(a, TT+1, TT)
        a(f'v_mul_f32 v{b}, v{TT+1}, v{b}')
        bf16r(a, b, TT)
        a(f'v_add_f32 v{b}, v{u}, v{b}')
    for r in range(0, 16, 2):
        a(f'v_cvt_pk_bf16_f32 {vr(G_ACC+r)}, {vr(G_ACC+r)}, {vr(G_ACC+r+1)}')
    for mt in range(2):
        for nt in range(2):
            for ii in (0, 2):
                r = 8*mt + 4*nt + ii
                a(f'global_store_short v{VO}, {vr(G_ACC+r)}, s[18:19] offset:{ii*1152 + 32*nt}')
                a(f'global_store_short_d16_hi v{VO}, {vr(G_ACC+r)}, s[18:19] offset:{(ii+1)*1152 + 32*nt}')
        if mt == 0:
            a(f'v_add_u32 v{VO}, {16*1152}, v{VO}')
    if INSTR:
        a('s_waitcnt vmcnt(0)')
        stamp(a, 5)
        a('s_cmp_lt_u32 s2, 8')
        a('s_cbranch_scc0 K3_END')
        a('s_cmp_eq_u32 s89, 0')
        a('s_cbranch_scc0 K3_END')
        a('s_mov_b32 s74, s2')
        dump_stamps(a, 5, None, None)
    a.label('K3_END')
    tl_end(a, 2); a('s_endpgm')

def main(outpath):
    hdr = open('gated_mix__ssm_conv_s4d__grouped_kv_mqa__prompt.s.ref').read().split('\n')
    head = [l for l in hdr if l.startswith(';') and '@launch' not in l and 'Override launch' not in l and 'grid=ceil' not in l]
    out = '\n'.join(head) + '\n'
    out += f'; @launch kernel=prep_kernel grid=({K1_GRID},1,1) block=(256,1,1) lds={K1_LDS}\n'
    out += f'; @launch kernel=attn_kernel grid=({K2_GRID},1,1) block=({K2_THREADS},1,1) lds={K2_LDS}\n'
    out += f'; @launch kernel=outp_kernel grid=({K3_GRID},1,1) block=(256,1,1) lds={K3_LDS}\n'
    out += '.amdgcn_target "amdgcn-amd-amdhsa--gfx950"\n'
    a = Asm()
    gen_k1(a); gen_k2(a); gen_k3(a)
    out += a.text()
    out += kernel_desc('prep_kernel', 216)
    out += kernel_desc('attn_kernel', 160)
    out += kernel_desc('outp_kernel', 232)
    open(outpath, 'w').write(out)

if __name__ == '__main__':
    if len(sys.argv) > 2 and sys.argv[2] == 'instr': INSTR = True
    if len(sys.argv) > 2 and sys.argv[2] == 'tl': TL = True
    main(sys.argv[1] if len(sys.argv) > 1 else 'gated_mix__ssm_conv_s4d__grouped_kv_mqa__prompt.s')
```

```python
import math, sys, struct

WS_Q   = 0
WS_O   = 2359296
WS_KVF = 4718592
PH_BYTES = 81920
PH_USED = 77824
KF1_OFF = 0
KF2_OFF = 32768
VF_OFF  = 40960
WS_G   = 4882432
WS_KMAX = 14483456
WS_KT  = 4890624
KT_HALF = 4224
KT_ROW = 8448
WS_UT  = 12124160
WS_YT  = 9764864

LOG2E = 1.4426950408889634
QSCALE = LOG2E / math.sqrt(18.0)
INSTR = False

def f32bits(x):
    return struct.unpack('<I', struct.pack('<f', x))[0]

class Asm:
    def __init__(self):
        self.lines = []
    def __call__(self, s):
        for ln in s.strip('\n').split('\n'):
            self.lines.append('    ' + ln.strip())
    def label(self, name):
        self.lines.append(name + ':')
    def raw(self, s):
        self.lines.append(s)
    def text(self):
        return '\n'.join(self.lines) + '\n'

def vr(a, n=1):
    return f'v{a}' if n == 1 else f'v[{a}:{a+n-1}]'
def sr(a, n=1):
    return f's{a}' if n == 1 else f's[{a}:{a+n-1}]'

TL = False
def tl_start(a):
    if TL:
        a('s_memrealtime s[80:81]')
def tl_end(a, kidx):
    if TL:
        a('s_memrealtime s[82:83]')
        load_ptr(a, 84, A_WS)
        a('s_waitcnt lgkmcnt(0) vmcnt(0)')
        a('s_mov_b64 exec, -1')
        a('v_cmp_eq_u32 vcc, 0, v0')
        a('s_and_saveexec_b64 s[86:87], vcc')
        a(f's_lshl_b32 s78, s2, 4')
        a(f's_add_u32 s78, s78, {0x3000000 + kidx*0x10000}')
        a('v_mov_b32 v1, s78')
        a('v_mov_b32 v2, s80')
        a('v_mov_b32 v3, s82')
        a('global_store_dwordx2 v1, v[2:3], s[84:85]')

def kernel_header(a, name):
    a.raw('.text')
    a.raw(f'.globl {name}')
    a.raw('.p2align 8')
    a.raw(f'.type {name},@function')
    a.label(name)

def kernel_desc(name, vgpr, sgpr=96):
    acc = (vgpr + 3) // 4 * 4
    return f'''.section .rodata,"a"
.p2align 6
.amdhsa_kernel {name}
  .amdhsa_next_free_vgpr {vgpr}
  .amdhsa_next_free_sgpr {sgpr}
  .amdhsa_accum_offset {acc}
  .amdhsa_group_segment_fixed_size 0
  .amdhsa_kernarg_size 128
  .amdhsa_user_sgpr_count 2
  .amdhsa_user_sgpr_kernarg_segment_ptr 1
  .amdhsa_system_sgpr_workgroup_id_x 1
.end_amdhsa_kernel
'''

A_U, A_LOGA, A_AIM, A_CRE, A_CIM, A_LOGDT, A_DSKIP, A_BX, A_WQ, A_WK, A_WV, A_WO, A_GW, A_OUT, A_DBG, A_WS = range(16)

def load_ptr(a, sdst, slot):
    a(f's_load_dwordx2 {sr(sdst,2)}, s[0:1], {slot*8}')
def ws_ptr(a, sdst, sws, off):
    a(f's_add_u32 {sr(sdst)}, {sr(sws)}, {off}')
    a(f's_addc_u32 {sr(sdst+1)}, {sr(sws+1)}, 0')
def bf16r(a, v, tmp):
    a(f'v_bfe_u32 {vr(tmp)}, {vr(v)}, 16, 1')
    a(f'v_add3_u32 {vr(v)}, {vr(v)}, {vr(tmp)}, s90')
    a(f'v_and_b32 {vr(v)}, 0xffff0000, {vr(v)}')
def div_const(a, sq, srem, ssrc, c, stmp):
    magic = (2**32 + c - 1)//c
    a(f's_mov_b32 {sr(stmp)}, {magic}')
    a(f's_mul_hi_u32 {sr(sq)}, {sr(ssrc)}, {sr(stmp)}')
    a(f's_mul_i32 {sr(stmp)}, {sr(sq)}, {c}')
    a(f's_sub_u32 {sr(srem)}, {sr(ssrc)}, {sr(stmp)}')
def stamp(a, k):
    if INSTR:
        a(f's_memtime s[{60+2*k}:{61+2*k}]')
def dump_stamps(a, n, cond_label, slot_sgpr_expr):
    load_ptr(a, 72, A_DBG)
    a('s_waitcnt lgkmcnt(0)')
    a('s_lshl_b32 s74, s74, 5')
    a('v_mov_b32 v1, s74')
    for k in range(1, n+1):
        a(f's_sub_u32 s75, s{60+2*k}, s60')
        a('v_mov_b32 v2, s75')
        a(f'global_store_dword v1, v2, s[72:73] offset:{4*k}')

G_L, G_G, G_I, G_W, G_AOFF, G_BOFF, G_LDS, G_TR, G_T0, G_T1, G_T2, G_T3 = range(1, 13)
NT = 3
G_BF = 16
G_ACC = 40
G_ABUF = 64
G_FREE = 208
BT_BYTES = 576*96
TRN_OFF = BT_BYTES
GEMM_LDS = BT_BYTES + 4*3072

def gemm_lane_setup(a):
    a(f'v_and_b32 {vr(G_L)}, 63, v0')
    a(f'v_lshrrev_b32 {vr(G_W)}, 6, v0')
    a(f'v_lshrrev_b32 {vr(G_G)}, 4, {vr(G_L)}')
    a(f'v_and_b32 {vr(G_I)}, 15, {vr(G_L)}')
    a('s_movk_i32 s91, 1152')
    a(f'v_readfirstlane_b32 s89, {vr(G_W)}')

def gemm_tile_map(a, src):
    a(f's_and_b32 s15, {src}, 7')
    a(f's_lshr_b32 s3, {src}, 3')
    div_const(a, 12, 13, 3, 12, 14)
    a('s_lshl_b32 s12, s12, 3')
    a('s_add_u32 s12, s12, s15')
    a('s_lshl_b32 s12, s12, 7')
    a('s_mul_i32 s13, s13, 48')

def gemm_a_setup(a, s_m0):
    a(f'v_lshl_add_u32 {vr(G_AOFF)}, {vr(G_W)}, 5, {vr(G_I)}')
    a(f'v_add_u32 {vr(G_AOFF)}, {sr(s_m0)}, {vr(G_AOFF)}')
    a(f'v_mul_lo_u32 {vr(G_AOFF)}, {vr(G_AOFF)}, s91')
    a(f'v_lshl_add_u32 {vr(G_AOFF)}, {vr(G_G)}, 4, {vr(G_AOFF)}')
    a(f'v_add_u32 {vr(G_LDS)}, {16*1152}, {vr(G_AOFF)}')

def a_load(a, sA, ks):
    base = G_ABUF + ks*8
    a(f'global_load_dwordx4 {vr(base, 4)}, {vr(G_AOFF)}, {sr(sA,2)} offset:{ks*64}')
    a(f'global_load_dwordx4 {vr(base+4, 4)}, {vr(G_LDS)}, {sr(sA,2)} offset:{ks*64}')

def gemm_stage_b_dma(a, sB, s_n0, tag):
    a(f's_lshl_b32 s92, {sr(s_n0)}, 1')
    a('s_lshl_b32 s88, s89, 10')
    a(f's_mov_b32 s87, {(2**32 + 5)//6}')
    for j in range(14):
        if j == 13:
            a('s_cmp_lt_u32 s89, 2')
            a(f's_cbranch_scc0 {tag}_B13')
        a(f'v_add_u32 {vr(G_T0)}, {256*j}, v0')
        a(f'v_mul_hi_u32 {vr(G_T1)}, {vr(G_T0)}, s87')
        a(f'v_mul_u32_u24 {vr(G_T2)}, 6, {vr(G_T1)}')
        a(f'v_sub_u32 {vr(G_T2)}, {vr(G_T0)}, {vr(G_T2)}')
        a(f'v_mul_lo_u32 {vr(G_BOFF)}, {vr(G_T1)}, s91')
        a(f'v_lshl_add_u32 {vr(G_BOFF)}, {vr(G_T2)}, 4, {vr(G_BOFF)}')
        a(f'v_add_u32 {vr(G_BOFF)}, s92, {vr(G_BOFF)}')
        a(f's_add_u32 m0, s88, {j*4096}')
        a('s_nop 0')
        a(f'global_load_lds_dwordx4 {vr(G_BOFF)}, {sr(sB,2)}')
    a.label(f'{tag}_B13')

def gemm_tr_setup(a):
    a(f'v_lshrrev_b32 {vr(G_T1)}, 2, {vr(G_I)}')
    a(f'v_lshl_add_u32 {vr(G_T1)}, {vr(G_G)}, 3, {vr(G_T1)}')
    a(f'v_mul_u32_u24 {vr(G_TR)}, 96, {vr(G_T1)}')
    a(f'v_and_b32 {vr(G_T0)}, 3, {vr(G_I)}')
    a(f'v_lshl_add_u32 {vr(G_TR)}, {vr(G_T0)}, 3, {vr(G_TR)}')

def gemm_main(a, sA, swap=False, pre=6, extra=None):
    extra = list(extra or [])
    def tr_reads(ks):
        off = ks*3072
        dst = G_BF + (ks % 2)*12
        for nt in range(NT):
            a(f'ds_read_b64_tr_b16 {vr(dst+4*nt,2)}, {vr(G_TR)} offset:{off + 32*nt}')
            a(f'ds_read_b64_tr_b16 {vr(dst+4*nt+2,2)}, {vr(G_TR)} offset:{off + 32*nt + 384}')
    issued = 2*pre
    pos = {ks: 2*ks + 2 for ks in range(pre)}
    tr_reads(0)
    for ks in range(18):
        if ks + 1 < 18:
            tr_reads(ks + 1)
        if ks + pre < 18:
            a_load(a, sA, ks + pre); issued += 2; pos[ks + pre] = issued
        elif extra:
            for _ in range(3):
                if extra:
                    extra.pop(0)(); issued += 1
        vm = min(63, issued - pos[ks])
        a(f's_waitcnt vmcnt({vm}) lgkmcnt({6 if ks + 1 < 18 else 0})')
        for mt in range(2):
            for nt in range(NT):
                X, W = vr(G_ABUF + ks*8 + 4*mt, 4), vr(G_BF + (ks % 2)*12 + 4*nt, 4)
                D = vr(G_ACC + 12*mt + 4*nt, 4)
                C = D if ks else '0'
                if swap:
                    a(f'v_mfma_f32_16x16x32_bf16 {D}, {W}, {X}, {C}')
                else:
                    a(f'v_mfma_f32_16x16x32_bf16 {D}, {X}, {W}, {C}')
    while extra:
        extra.pop(0)()
    a('s_nop 15')

def gemm_store_tile(a, sOut):
    a(f'v_mul_u32_u24 {vr(G_T0)}, {3072}, {vr(G_W)}')
    a(f'v_mul_u32_u24 {vr(G_T1)}, 384, {vr(G_G)}')
    a(f'v_add3_u32 {vr(G_T0)}, {vr(G_T0)}, {vr(G_T1)}, s86')
    a(f'v_lshl_add_u32 {vr(G_T1)}, {vr(G_I)}, 1, {vr(G_T0)}')
    for mt in range(2):
        for nt in range(NT):
            r0 = G_ACC + 12*mt + 4*nt
            a(f'v_cvt_pk_bf16_f32 v{r0}, v{r0}, v{r0+1}')
            a(f'v_cvt_pk_bf16_f32 v{r0+2}, v{r0+2}, v{r0+3}')
            for r in range(4):
                off = (16*mt + r)*96 + 32*nt
                src = r0 + (r & 2)
                op = 'ds_write_b16_d16_hi' if r & 1 else 'ds_write_b16'
                a(f'{op} {vr(G_T1)}, v{src} offset:{off}')
    a(f's_mov_b32 s87, {(2**32 + 5)//6}')
    a(f'v_mul_u32_u24 {vr(G_T0)}, {3072}, {vr(G_W)}')
    a(f'v_add_u32 {vr(G_T0)}, s86, {vr(G_T0)}')
    a(f'v_lshl_add_u32 {vr(G_T0)}, {vr(G_L)}, 4, {vr(G_T0)}')
    a('s_waitcnt lgkmcnt(0)')
    for j in range(3):
        a(f'ds_read_b128 {vr(G_ABUF+4*j,4)}, {vr(G_T0)} offset:{j*1024}')
    a(f'v_lshlrev_b32 {vr(G_T3)}, 5, {vr(G_W)}')
    a(f'v_add_u32 {vr(G_T3)}, s12, {vr(G_T3)}')
    a(f's_lshl_b32 s92, s13, 1')
    for j in range(3):
        a(f'v_add_u32 {vr(G_T0)}, {64*j}, {vr(G_L)}')
        a(f'v_mul_hi_u32 {vr(G_T1)}, {vr(G_T0)}, s87')
        a(f'v_mul_u32_u24 {vr(G_T2)}, 6, {vr(G_T1)}')
        a(f'v_sub_u32 {vr(G_T2)}, {vr(G_T0)}, {vr(G_T2)}')
        a(f'v_add_u32 {vr(G_T1)}, {vr(G_T3)}, {vr(G_T1)}')
        a(f'v_mul_lo_u32 {vr(G_T1)}, {vr(G_T1)}, s91')
        a(f'v_lshl_add_u32 {vr(G_T1)}, {vr(G_T2)}, 4, {vr(G_T1)}')
        a(f'v_add_u32 {vr(G_T1)}, s92, {vr(G_T1)}')
        a(f's_waitcnt lgkmcnt({2-j})')
        a(f'global_store_dwordx4 {vr(G_T1)}, {vr(G_ABUF+4*j,4)}, {sr(sOut,2)}')

N_KGEN, N_QP, N_KV, N_UT = 192, 192, 32, 96
K1_GRID = N_KGEN + N_QP + N_KV + N_UT
KG_ROW = 528
K1_LDS = GEMM_LDS

def gen_k1(a):
    kernel_header(a, 'prep_kernel')
    tl_start(a)
    stamp(a, 0)
    a('s_movk_i32 s90, 0x7fff')
    load_ptr(a, 4, A_U)
    load_ptr(a, 6, A_WS)
    a(f's_cmp_lt_u32 s2, {N_KGEN}')
    a('s_cbranch_scc1 K1_KGEN')
    a(f's_cmp_lt_u32 s2, {N_KGEN+N_QP}')
    a('s_cbranch_scc1 K1_QP')
    a(f's_cmp_lt_u32 s2, {N_KGEN+N_QP+N_KV}')
    a('s_cbranch_scc1 K1_KV')
    a(f's_cmp_lt_u32 s2, {K1_GRID}')
    a('s_cbranch_scc1 K1_UT')
    a('s_endpgm')

    a.label('K1_QP')
    load_ptr(a, 8, A_WQ)
    a(f's_sub_u32 s24, s2, {N_KGEN}')
    gemm_tile_map(a, 's24')
    gemm_lane_setup(a)
    gemm_a_setup(a, 12)
    a(f's_mov_b32 s86, {TRN_OFF}')
    a('s_waitcnt lgkmcnt(0)')
    gemm_stage_b_dma(a, 8, 13, 'K1QP')
    for ks in range(6):
        a_load(a, 4, ks)
    gemm_tr_setup(a)
    a('s_waitcnt vmcnt(12)')
    a('s_barrier')
    gemm_main(a, 4)
    ws_ptr(a, 16, 6, WS_Q)
    a(f's_mov_b32 s93, {f32bits(QSCALE)}')
    for r in range(24):
        a(f'v_mul_f32 {vr(G_ACC+r)}, s93, {vr(G_ACC+r)}')
    gemm_store_tile(a, 16)
    tl_end(a, 0); a('s_endpgm')

    a.label('K1_UT')
    a(f's_sub_u32 s3, s2, {N_KGEN+N_QP+N_KV}')
    div_const(a, 12, 13, 3, 3, 14)
    a('s_movk_i32 s91, 1152')
    a(f's_mov_b32 s87, {(2**32 + 23)//24}')
    a('s_lshl_b32 s14, s12, 6')
    a('s_mul_i32 s15, s13, 384')
    a('s_waitcnt lgkmcnt(0)')
    for j in range(6):
        a(f'v_add_u32 v1, {256*j}, v0')
        a('v_mul_hi_u32 v2, v1, s87')
        a('v_mul_u32_u24 v3, 24, v2')
        a('v_sub_u32 v3, v1, v3')
        a('v_add_u32 v2, s14, v2')
        a('v_mul_lo_u32 v2, v2, s91')
        a('v_lshl_add_u32 v2, v3, 4, v2')
        a('v_add_u32 v2, s15, v2')
        a(f'global_load_dwordx4 v[{16+4*j}:{19+4*j}], v2, s[4:5]')
    a('v_lshlrev_b32 v4, 4, v0')
    for j in range(6):
        a(f's_waitcnt vmcnt({5-j})')
        a(f'ds_write_b128 v4, v[{16+4*j}:{19+4*j}] offset:{j*4096}')
    a('v_lshrrev_b32 v5, 6, v0')
    a('v_and_b32 v6, 15, v0')
    a('v_lshrrev_b32 v7, 2, v6')
    a('v_lshl_add_u32 v7, v5, 4, v7')
    a('v_mul_u32_u24 v7, 384, v7')
    a('v_bfe_u32 v8, v0, 4, 2')
    a('v_lshl_add_u32 v7, v8, 5, v7')
    a('v_and_b32 v9, 3, v0')
    a('v_lshl_add_u32 v7, v9, 3, v7')
    a('s_waitcnt lgkmcnt(0)')
    a('s_barrier')
    for p in range(3):
        for e in range(4):
            a(f'ds_read_b64_tr_b16 v[{16+8*p+2*e}:{17+8*p+2*e}], v7 offset:{e*4*384 + p*128}')
    a('v_lshl_add_u32 v8, v8, 4, v6')
    a('s_mul_i32 s15, s13, 192')
    a('v_add_u32 v8, s15, v8')
    a('v_lshlrev_b32 v8, 12, v8')
    a('v_lshlrev_b32 v5, 5, v5')
    a('v_add_u32 v8, v5, v8')
    a('s_lshl_b32 s14, s12, 7')
    a('v_add_u32 v8, s14, v8')
    ws_ptr(a, 16, 6, WS_UT)
    for p in range(3):
        a(f's_waitcnt lgkmcnt({8-4*p})')
        a(f'global_store_dwordx4 v8, v[{16+8*p}:{19+8*p}], s[16:17]')
        a(f'global_store_dwordx4 v8, v[{20+8*p}:{23+8*p}], s[16:17] offset:16')
        if p < 2:
            a(f'v_add_u32 v8, {64*4096}, v8')
    tl_end(a, 0); a('s_endpgm')

    a.label('K1_KV')
    load_ptr(a, 8, A_WK)
    load_ptr(a, 10, A_WV)
    load_ptr(a, 18, A_GW)
    a(f's_sub_u32 s3, s2, {N_KGEN+N_QP}')
    a('s_and_b32 s15, s3, 1')
    a('s_lshr_b32 s12, s3, 1')
    a('s_lshl_b32 s12, s12, 7')
    gemm_lane_setup(a)
    gemm_a_setup(a, 12)
    a('s_waitcnt lgkmcnt(0)')
    a('s_cmp_eq_u32 s15, 0')
    a('s_cselect_b32 s8, s8, s10')
    a('s_cselect_b32 s9, s9, s11')
    a(f'v_mov_b32 {vr(G_T3)}, s15')
    a(f'v_cmp_eq_u32 s[24:25], 0, {vr(G_T3)}')
    def w_loads(j, WR):
        a(f'v_add_u32 {vr(G_T0)}, {256*j}, v0')
        a(f'v_mul_u32_u24 {vr(G_T1)}, 36, {vr(G_T0)}')
        a(f'global_load_dwordx4 {vr(WR,4)}, {vr(G_T1)}, s[8:9]')
        a(f'global_load_dwordx4 {vr(WR+4,4)}, {vr(G_T1)}, s[8:9] offset:16')
        a(f'global_load_dword {vr(WR+8)}, {vr(G_T1)}, s[8:9] offset:32')
        a(f'v_lshlrev_b32 {vr(G_T2)}, 1, {vr(G_T0)}')
        a(f'global_load_ushort {vr(WR+9)}, {vr(G_T2)}, s[18:19]')
        for z in range(10, 16):
            a(f'v_mov_b32 {vr(WR+z)}, 0')
    def w_writes(j, WR):
        a(f'v_cndmask_b32 {vr(WR+9)}, 0, {vr(WR+9)}, s[24:25]')
        a(f'v_mul_u32_u24 {vr(G_T2)}, 96, v0')
        for z in range(4):
            a(f'ds_write_b128 {vr(G_T2)}, {vr(WR+4*z,4)} offset:{j*24576 + 16*z}')
        for z in range(4, 6):
            a(f'ds_write_b128 {vr(G_T2)}, {vr(WR+12,4)} offset:{j*24576 + 16*z}')
    w_loads(0, 16); w_loads(1, 32);
    a('s_cmp_eq_u32 s89, 0')
    a('s_cbranch_scc0 K1_KV_N3')
    w_loads(2, 48)
    a('s_waitcnt vmcnt(0)')
    w_writes(2, 48)
    a.label('K1_KV_N3')
    a('s_waitcnt vmcnt(0)')
    w_writes(0, 16); w_writes(1, 32)
    for ks in range(6):
        a_load(a, 4, ks)
    gemm_tr_setup(a)
    a('s_waitcnt lgkmcnt(0)')
    a('s_barrier')
    a(f's_lshr_b32 s13, s12, 5')
    a(f'v_add_u32 {vr(G_T0)}, s13, {vr(G_W)}')
    a(f'v_lshrrev_b32 {vr(G_T1)}, 5, {vr(G_T0)}')
    a(f'v_and_b32 {vr(G_T0)}, 31, {vr(G_T0)}')
    a(f's_mov_b32 s14, {PH_BYTES}')
    a(f'v_mul_lo_u32 v13, {vr(G_T1)}, s14')
    a(f'v_mov_b32 v14, {vr(G_T0)}')
    ws_ptr(a, 16, 6, WS_KVF)
    a('s_cmp_eq_u32 s15, 1')
    a('s_cbranch_scc1 K1_KV_V')
    gemm_main(a, 4, swap=True)
    A0, A1 = G_ACC, G_ACC + 12
    KM = G_FREE
    a(f'v_max3_f32 v{KM}, abs(v{A0}), abs(v{A0+1}), abs(v{A0+2})')
    a(f'v_max3_f32 v{KM}, v{KM}, abs(v{A0+3}), abs(v{A1})')
    a(f'v_max3_f32 v{KM}, v{KM}, abs(v{A1+1}), abs(v{A1+2})')
    a(f'v_max_f32 v{KM}, v{KM}, abs(v{A1+3})')
    a(f'v_max3_f32 v{KM+1}, abs(v{A0+4}), abs(v{A0+5}), abs(v{A1+4})')
    a(f'v_max_f32 v{KM+1}, v{KM+1}, abs(v{A1+5})')
    a(f'v_cmp_eq_u32 vcc, 0, {vr(G_G)}')
    a('s_nop 1')
    a(f'v_cndmask_b32 v{KM+1}, 0, v{KM+1}, vcc')
    a(f'v_max_f32 v{KM}, v{KM}, v{KM+1}')
    for sh in (1, 2, 4, 8):
        a('s_nop 1')
        a(f'v_max_f32_dpp v{KM}, v{KM}, v{KM} row_ror:{sh} row_mask:0xf bank_mask:0xf')
    a('s_nop 1')
    a(f'v_readlane_b32 s26, v{KM}, 0')
    a(f'v_readlane_b32 s27, v{KM}, 16')
    a(f'v_readlane_b32 s28, v{KM}, 32')
    a(f'v_readlane_b32 s29, v{KM}, 48')
    a('s_nop 1')
    a(f'v_mov_b32 v{KM}, s26')
    a(f'v_max_f32 v{KM}, s27, v{KM}')
    a(f'v_max_f32 v{KM}, s28, v{KM}')
    a(f'v_max_f32 v{KM}, s29, v{KM}')
    ws_ptr(a, 26, 6, WS_KMAX)
    a(f'v_mov_b32 v{KM+1}, s13')
    a(f'v_add_u32 v{KM+1}, {vr(G_W)}, v{KM+1}')
    a(f'v_lshlrev_b32 v{KM+1}, 2, v{KM+1}')
    a(f'global_store_dword v{KM+1}, v{KM}, s[26:27]')
    a(f'v_lshl_add_u32 {vr(G_T2)}, v14, 10, v13')
    a(f'v_lshrrev_b32 {vr(G_T3)}, 1, {vr(G_G)}')
    a(f'v_lshl_add_u32 {vr(G_T2)}, {vr(G_T3)}, 9, {vr(G_T2)}')
    a(f'v_lshl_add_u32 {vr(G_T2)}, {vr(G_I)}, 4, {vr(G_T2)}')
    a(f'v_and_b32 {vr(G_T3)}, 1, {vr(G_G)}')
    a(f'v_lshl_add_u32 {vr(G_T2)}, {vr(G_T3)}, 3, {vr(G_T2)}')
    for kt in range(2):
        r = G_ACC + 12*kt
        a(f'v_cvt_pk_bf16_f32 v{r}, v{r}, v{r+1}')
        a(f'v_cvt_pk_bf16_f32 v{r+1}, v{r+2}, v{r+3}')
        a(f'global_store_dwordx2 {vr(G_T2)}, {vr(r,2)}, s[16:17] offset:{KF1_OFF + kt*256}')
    a(f'v_cmp_eq_u32 vcc, 0, {vr(G_G)}')
    a('s_and_saveexec_b64 s[20:21], vcc')
    a(f'v_lshl_add_u32 {vr(G_T2)}, v14, 8, v13')
    a(f'v_lshl_add_u32 {vr(G_T2)}, {vr(G_I)}, 3, {vr(G_T2)}')
    a(f'v_add_u32 {vr(G_T2)}, {KF2_OFF}, {vr(G_T2)}')
    ws_ptr(a, 18, 6, WS_G)
    a(f'v_lshl_add_u32 {vr(G_T1)}, {vr(G_W)}, 5, {vr(G_I)}')
    a(f'v_add_u32 {vr(G_T1)}, s12, {vr(G_T1)}')
    a(f'v_lshlrev_b32 {vr(G_T1)}, 2, {vr(G_T1)}')
    for kt in range(2):
        r = G_ACC + 4 + 12*kt
        a(f'v_cvt_pk_bf16_f32 v{r}, v{r}, v{r+1}')
        a(f'v_mov_b32 v{r+1}, 0x3f80')
        a(f'global_store_dwordx2 {vr(G_T2)}, {vr(r,2)}, s[16:17] offset:{kt*128}')
        bf16r(a, r+2, G_T3)
        a(f'v_mul_f32 v{r+3}, {f32bits(-LOG2E)}, v{r+2}')
        a(f'v_exp_f32 v{r+3}, v{r+3}')
        a('s_nop 0')
        a(f'v_add_f32 v{r+3}, 1.0, v{r+3}')
        a(f'v_rcp_f32 v{r+3}, v{r+3}')
        a('s_nop 0')
        bf16r(a, r+3, G_T3)
        a(f'global_store_dword {vr(G_T1)}, v{r+3}, s[18:19] offset:{kt*64}')
    tl_end(a, 0); a('s_endpgm')
    a.label('K1_KV_V')
    gemm_main(a, 4, swap=False)
    a(f'v_mul_lo_u32 {vr(G_T2)}, v14, s91')
    a(f'v_add_u32 {vr(G_T2)}, v13, {vr(G_T2)}')
    a(f'v_and_b32 {vr(G_T3)}, 1, {vr(G_G)}')
    a(f'v_mul_u32_u24 {vr(G_T3)}, 18, {vr(G_T3)}')
    a(f'v_add_u32 {vr(G_T3)}, {vr(G_I)}, {vr(G_T3)}')
    a(f'v_lshl_add_u32 {vr(G_T2)}, {vr(G_T3)}, 4, {vr(G_T2)}')
    a(f'v_lshrrev_b32 {vr(G_T3)}, 1, {vr(G_G)}')
    a(f'v_lshl_add_u32 {vr(G_T2)}, {vr(G_T3)}, 3, {vr(G_T2)}')
    a(f'v_add_u32 {vr(G_T2)}, {VF_OFF}, {vr(G_T2)}')
    for nt in range(2):
        if nt == 1:
            a(f'v_cmp_gt_u32 vcc, 2, {vr(G_I)}')
            a('s_and_saveexec_b64 s[20:21], vcc')
        for mt in range(2):
            r = G_ACC + 12*mt + 4*nt
            a(f'v_cvt_pk_bf16_f32 v{r}, v{r}, v{r+1}')
            a(f'v_cvt_pk_bf16_f32 v{r+1}, v{r+2}, v{r+3}')
            a(f'global_store_dwordx2 {vr(G_T2)}, {vr(r,2)}, s[16:17] offset:{mt*576 + nt*256}')
    tl_end(a, 0); a('s_endpgm')

    a.label('K1_KGEN')
    load_ptr(a, 8, A_LOGA); load_ptr(a, 10, A_AIM); load_ptr(a, 12, A_CRE); load_ptr(a, 14, A_CIM); load_ptr(a, 16, A_LOGDT)
    L, W = 1, 2
    VDT, A2, BB, CRr, CIi = 4, 5, 6, 7, 8
    ZR, ZI = 10, 11
    FR, FI = 12, 13
    XR, XI = 14, 15
    YR, YI = 16, 17
    VWA, VWB = 9, 18
    T = 20
    a(f'v_and_b32 v{L}, 63, v0')
    a(f'v_lshrrev_b32 v{W}, 6, v0')
    a('s_nop 1')
    a(f'v_readfirstlane_b32 s89, v{W}')
    a(f'v_and_b32 v{T}, 1, v{W}')
    a(f'v_lshl_add_u32 v{T}, v{T}, 6, v{L}')
    a(f'v_lshlrev_b32 v{T+1}, 1, v{T}')
    a('s_mul_i32 s30, s2, 3')
    a('s_lshl_b32 s3, s30, 8')
    a(f'v_add_u32 v{T+1}, s3, v{T+1}')
    a('s_lshl_b32 s3, s30, 1')
    a(f'v_mov_b32 v{T+2}, s3')
    a('s_waitcnt lgkmcnt(0)')
    PR = 120
    for cc in range(3):
        a(f'global_load_ushort v{PR+5*cc}, v{T+2}, s[16:17] offset:{2*cc}')
        a(f'global_load_ushort v{PR+5*cc+1}, v{T+1}, s[8:9] offset:{256*cc}')
        a(f'global_load_ushort v{PR+5*cc+2}, v{T+1}, s[10:11] offset:{256*cc}')
        a(f'global_load_ushort v{PR+5*cc+3}, v{T+1}, s[12:13] offset:{256*cc}')
        a(f'global_load_ushort v{PR+5*cc+4}, v{T+1}, s[14:15] offset:{256*cc}')
    NB4 = 119
    a(f'v_lshlrev_b32 v{NB4}, 2, v{T}')
    a(f'v_lshlrev_b32 v{T+3}, 2, v{T}')
    a(f's_mov_b32 s20, {f32bits(LOG2E)}')
    a(f's_mov_b32 s21, {f32bits(1.0/(2*math.pi))}')
    a('s_lshr_b32 s22, s89, 1')
    for cc in range(3):
        a(f's_add_u32 s31, s30, {cc}')
        a(f's_waitcnt vmcnt({0})')
        for k5, v in enumerate((VDT, A2, BB, CRr, CIi)):
            a(f'v_lshlrev_b32 v{v}, 16, v{PR+5*cc+k5}')
        a(f'v_mov_b32 v{T+3}, v{NB4}')
        if cc == 0: stamp(a, 1)
        a(f'v_mul_f32 v{VDT}, s20, v{VDT}')
        a(f'v_mul_f32 v{A2}, s20, v{A2}')
        a(f'v_exp_f32 v{VDT}, v{VDT}')
        a(f'v_exp_f32 v{A2}, v{A2}')
        a('s_nop 0')
        bf16r(a, VDT, T)
        bf16r(a, A2, T)
        a(f'v_mul_f32 v{A2}, v{VDT}, v{A2}')
        a(f'v_mul_f32 v{BB}, v{VDT}, v{BB}')
        a(f'v_mul_f32 v{A2}, s20, v{A2}')
        a(f'v_mul_f32 v{BB}, s21, v{BB}')
        a(f'v_mul_f32 v{CRr}, v{VDT}, v{CRr}')
        a(f'v_mul_f32 v{CIi}, v{VDT}, v{CIi}')
        a(f'v_add_f32 v{CRr}, v{CRr}, v{CRr}')
        a(f'v_add_f32 v{CIi}, v{CIi}, v{CIi}')
        def zpow(dr, di, p, conj):
            a(f'v_mul_f32 v{T}, {f32bits(-float(p))}, v{A2}')
            a(f'v_mul_f32 v{T+1}, {f32bits(float(p))}, v{BB}')
            a(f'v_exp_f32 v{T}, v{T}')
            a(f'v_fract_f32 v{T+1}, v{T+1}')
            a(f'v_cos_f32 v{dr}, v{T+1}')
            a(f'v_sin_f32 v{di}, v{T+1}')
            a('s_nop 0')
            a(f'v_mul_f32 v{dr}, v{T}, v{dr}')
            if conj: a(f'v_mul_f32 v{di}, -v{T}, v{di}')
            else:    a(f'v_mul_f32 v{di}, v{T}, v{di}')
        def cmul_conjC(dr, di, zr, zi):
            a(f'v_mul_f32 v{dr}, v{CRr}, v{zr}')
            a(f'v_mul_f32 v{di}, v{CRr}, v{zi}')
            a(f'v_fma_f32 v{dr}, v{CIi}, v{zi}, v{dr}')
            a(f'v_fma_f32 v{di}, -v{CIi}, v{zr}, v{di}')
        zpow(ZR, ZI, 32, True)
        FA_LDS, FB_LDS = 0, 64*KG_ROW
        a('s_cmp_eq_u32 s22, 0')
        a(f's_cbranch_scc0 K1_KG_P1_{cc}')
        zpow(FR, FI, 1, False)
        a(f'v_mov_b32 v{XR}, v{CRr}')
        a(f'v_sub_f32 v{XI}, 0, v{CIi}')
        a(f'v_mov_b32 v{YR}, v{FR}')
        a(f'v_mov_b32 v{YI}, v{FI}')
        a(f'v_mov_b32 v{VWA}, v{T+3}')
        a(f'v_add_u32 v{VWB}, {FB_LDS}, v{T+3}')
        def step(sr_, si_, mr, mi, t0):
            a(f'v_pk_mul_f32 v[{t0}:{t0+1}], v[{sr_}:{si_}], v[{mr}:{mi}] op_sel_hi:[1,0]')
            a(f'v_pk_fma_f32 v[{sr_}:{si_}], v[{sr_}:{si_}], v[{mr}:{mi}], v[{t0}:{t0+1}] op_sel:[1,1,0] op_sel_hi:[0,1,1] neg_lo:[1,0,0]')
        for k in range(32):
            if k < 16:
                a(f'v_cvt_pk_bf16_f32 v{T+4}, v{XR}, v{XI}')
                a(f'ds_write_b32 v{VWA}, v{T+4} offset:{k*KG_ROW}')
            a(f'v_cvt_pk_bf16_f32 v{T+5}, v{YR}, v{YI}')
            a(f'ds_write_b32 v{VWB}, v{T+5} offset:{k*KG_ROW}')
            if k < 15: step(XR, XI, ZR, ZI, T+6)
            if k < 31: step(YR, YI, FR, FI, T+8)
        a(f's_branch K1_KG_J_{cc}')
        a.label(f'K1_KG_P1_{cc}')
        zpow(FR, FI, 512, True)
        cmul_conjC(XR, XI, FR, FI)
        zpow(FR, FI, 1280, True)
        cmul_conjC(YR, YI, FR, FI)
        a(f'v_add_u32 v{VWA}, {16*KG_ROW}, v{T+3}')
        a(f'v_add_u32 v{VWB}, {40*KG_ROW}, v{T+3}')
        for k in range(24):
            a(f'v_cvt_pk_bf16_f32 v{T+4}, v{XR}, v{XI}')
            a(f'ds_write_b32 v{VWA}, v{T+4} offset:{k*KG_ROW}')
            a(f'v_cvt_pk_bf16_f32 v{T+5}, v{YR}, v{YI}')
            a(f'ds_write_b32 v{VWB}, v{T+5} offset:{k*KG_ROW}')
            if k < 23:
                step(XR, XI, ZR, ZI, T+6)
                step(YR, YI, ZR, ZI, T+8)
        a.label(f'K1_KG_J_{cc}')
        if cc == 0: stamp(a, 2)
        a('s_waitcnt lgkmcnt(0)')
        a('s_barrier')
        H, I = 3, 19
        D = 32
        FAr, FBr = 48, 80
        a(f'v_lshrrev_b32 v{H}, 5, v{L}')
        a(f'v_and_b32 v{I}, 31, v{L}')
        a(f's_movk_i32 s3, {KG_ROW}')
        a(f'v_and_b32 v{T}, 1, v{W}')
        a(f'v_lshl_add_u32 v{T}, v{T}, 5, v{I}')
        a(f'v_mul_lo_u32 v{T}, v{T}, s3')
        a(f'v_lshl_add_u32 v{T}, v{H}, 4, v{T}')
        a(f's_lshl_b32 s23, s22, 8')
        a(f'v_add_u32 v{T}, s23, v{T}')
        a(f'v_mul_lo_u32 v{T+1}, v{I}, s3')
        a(f'v_lshl_add_u32 v{T+1}, v{H}, 4, v{T+1}')
        a(f'v_add_u32 v{T+1}, s23, v{T+1}')
        a(f'v_add_u32 v{T+1}, {FB_LDS}, v{T+1}')
        for s in range(8):
            a(f'ds_read_b128 {vr(FAr+4*s,4)}, v{T} offset:{32*s}')
            a(f'ds_read_b128 {vr(FBr+4*s,4)}, v{T+1} offset:{32*s}')
        for s in range(8):
            a(f's_waitcnt lgkmcnt({min(15, 2*(7-s))})')
            C = vr(D,16) if s else '0'
            a(f'v_mfma_f32_32x32x16_bf16 {vr(D,16)}, {vr(FAr+4*s,4)}, {vr(FBr+4*s,4)}, {C}')
        if cc == 0: stamp(a, 3)
        a('s_barrier')
        a(f's_mul_i32 s24, s22, 8208')
        a(f'v_lshlrev_b32 v{T}, 9, v{H}')
        a(f'v_lshl_add_u32 v{T}, v{I}, 2, v{T}')
        a(f'v_add_u32 v{T}, s24, v{T}')
        a('s_and_b32 s25, s89, 1')
        a('s_lshl_b32 s25, s25, 12')
        a(f'v_add_u32 v{T}, s25, v{T}')
        a('s_nop 7')
        for r in range(16):
            q, ii = divmod(r, 4)
            a(f'ds_write_b32 v{T}, v{D+r} offset:{4 + 1024*q + 128*ii}')
        a('s_cmp_eq_u32 s22, 0')
        a(f's_cbranch_scc0 K1_KG_NS_{cc}')
        a(f'v_mov_b32 v{T+2}, v{CRr}')
        for sh in (1, 2, 4, 8):
            a('s_nop 1')
            a(f'v_add_f32_dpp v{T+2}, v{T+2}, v{T+2} row_ror:{sh} row_mask:0xf bank_mask:0xf')
        a('s_nop 1')
        a(f'v_readlane_b32 s26, v{T+2}, 0')
        a(f'v_readlane_b32 s27, v{T+2}, 16')
        a(f'v_readlane_b32 s28, v{T+2}, 32')
        a(f'v_readlane_b32 s29, v{T+2}, 48')
        a('s_nop 1')
        a(f'v_mov_b32 v{T+2}, s26')
        a(f'v_add_f32 v{T+2}, s27, v{T+2}')
        a(f'v_add_f32 v{T+2}, s28, v{T+2}')
        a(f'v_add_f32 v{T+2}, s29, v{T+2}')
        a('s_and_b32 s25, s89, 1')
        a('s_mul_i32 s25, s25, 8208')
        a(f'v_mov_b32 v{T+3}, s25')
        a(f'ds_write_b32 v{T+3}, v{T+2}')
        a.label(f'K1_KG_NS_{cc}')
        a('s_waitcnt lgkmcnt(0)')
        a('s_barrier')
        if cc == 0: stamp(a, 4)
        G = 24
        a(f'v_lshlrev_b32 v{T}, 3, v0')
        a(f'v_sub_u32 v{T+1}, 2047, v{T}')
        for e in range(9):
            a(f'v_subrev_u32 v{G+e}, {e}, v{T+1}')
        a(f'v_cmp_gt_i32 vcc, 0, v{G+8}')
        a(f'v_max_i32 v{G+8}, 0, v{G+8}')
        for e in range(9):
            a(f'v_cvt_f32_u32 v{G+e}, v{G+e}')
        for e in range(9):
            bf16r(a, G+e, T+2)
        for e in range(9):
            a(f'v_cvt_u32_f32 v{G+e}, v{G+e}')
            a(f'v_lshlrev_b32 v{G+e}, 2, v{G+e}')
        V = 40
        for e in range(9):
            a(f'ds_read_b32 v{V+2*e}, v{G+e}')
            a(f'ds_read_b32 v{V+2*e+1}, v{G+e} offset:8208')
        a('s_waitcnt lgkmcnt(0)')
        for e in range(9):
            a(f'v_add_f32 v{V+2*e}, v{V+2*e}, v{V+2*e+1}')
        a(f'v_cndmask_b32 v{V+16}, v{V+16}, 0, vcc')
        for e in range(0, 8, 2):
            a(f'v_cvt_pk_bf16_f32 v{60+e//2}, v{V+2*e}, v{V+2*(e+1)}')
            a(f'v_cvt_pk_bf16_f32 v{64+e//2}, v{V+2*(e+1)}, v{V+2*(e+2)}')
        for i in range(8):
            a(f'v_mov_b32 v{136+8*cc+i}, v{60+i}')
        if cc == 0: stamp(a, 5)
        a('s_barrier')
    ws_ptr(a, 16, 6, WS_KT)
    a(f's_mul_i32 s3, s30, {KT_ROW}')
    a(f'v_lshlrev_b32 v{T+1}, 4, v0')
    a(f'v_add_u32 v{T+1}, s3, v{T+1}')
    for cc in range(3):
        a(f'global_store_dwordx4 v{T+1}, v[{136+8*cc}:{139+8*cc}], s[16:17]')
        a(f'v_add_u32 v{T+2}, {KT_HALF}, v{T+1}')
        a(f'global_store_dwordx4 v{T+2}, v[{140+8*cc}:{143+8*cc}], s[16:17]')
        a(f'v_add_u32 v{T+1}, {KT_ROW}, v{T+1}')
    a(f'v_cmp_gt_u32 vcc, 48, v0')
    a('s_and_saveexec_b64 s[32:33], vcc')
    a('s_cbranch_execz K1_KG_E')
    for i in range(4):
        a(f'v_mov_b32 v{68+i}, 0')
    a(f'v_lshrrev_b32 v{T+1}, 3, v0')
    a(f'v_mul_u32_u24 v{T+1}, {KT_HALF}, v{T+1}')
    a(f'v_and_b32 v{T+2}, 7, v0')
    a(f'v_lshl_add_u32 v{T+1}, v{T+2}, 4, v{T+1}')
    a(f'v_add_u32 v{T+1}, s3, v{T+1}')
    a(f'v_add_u32 v{T+1}, 4096, v{T+1}')
    a(f'global_store_dwordx4 v{T+1}, v[68:71], s[16:17]')
    a.label('K1_KG_E')
    a('s_mov_b64 exec, -1')
    if INSTR:
        a('s_cmp_lt_u32 s2, 8')
        a('s_cbranch_scc0 K1_KG_ND')
        a('s_cmp_eq_u32 s89, 0')
        a('s_cbranch_scc0 K1_KG_ND')
        a('s_mov_b32 s74, s2')
        dump_stamps(a, 5, None, None)
        a.label('K1_KG_ND')
    tl_end(a, 0); a('s_endpgm')

K2_GRID = 256
K2_THREADS = 704
CS = 4256
CONV_LDS0 = PH_USED
NCP = 4
CONV_SZ = NCP*CS + 2048 + 4096
K2_CNT = PH_USED + 3*CONV_SZ
K2_LDS = K2_CNT + 16
THR = 8.0

def gen_k2(a):
    kernel_header(a, 'attn_kernel')
    tl_start(a)
    stamp(a, 0)
    a('s_movk_i32 s90, 0x7fff')
    a(f's_cmp_ge_u32 s2, {K2_GRID}')
    a('s_cbranch_scc1 K2_END')
    load_ptr(a, 6, A_WS)
    load_ptr(a, 4, A_U)
    a('v_lshrrev_b32 v1, 6, v0')
    a('s_nop 0')
    a('v_readfirstlane_b32 s3, v1')
    a('s_nop 3')
    a('s_cmp_ge_u32 s3, 8')
    a('s_cbranch_scc1 K2_CONV')
    a('s_setprio 3')
    L, H, I = 1, 2, 3
    VK1, VK2, VV = 4, 5, 6
    VST, VGO = 7, 8
    VM, VMX, T0, T1, T2, T3 = 9, 10, 11, 12, 13, 14
    VBND = 152
    Q1, Q2 = 16, 20
    P = 24
    S = [32, 48]
    O = 64
    KA = [80, 84]; KB = [88, 92]; VA = [96, 104]
    STG = 112
    a(f'v_and_b32 v{L}, 63, v0')
    a(f'v_lshrrev_b32 v{H}, 5, v{L}')
    a(f'v_and_b32 v{I}, 31, v{L}')
    a('s_waitcnt lgkmcnt(0)')
    ws_ptr(a, 8, 6, WS_KVF)
    ws_ptr(a, 10, 6, WS_Q)
    ws_ptr(a, 12, 6, WS_O)
    a(f'v_lshlrev_b32 v{VST}, 4, v0')
    a(f'v_mov_b32 v{VGO}, v{VST}')
    def stage_loads():
        for j in range(10):
            if j == 9:
                a('s_cmp_lt_u32 s3, 4')
                lab = f'K2_SL{stage_loads.n}'
                a(f's_cbranch_scc0 {lab}')
            a(f'global_load_dwordx4 {vr(STG+4*j,4)}, v{VGO}, s[8:9]')
            if j == 9:
                a.label(lab)
                stage_loads.n += 1
            a(f'v_add_u32 v{VGO}, 8192, v{VGO}')
    stage_loads.n = 0
    def stage_writes(extra):
        a(f's_waitcnt vmcnt({extra})')
        for j in range(10):
            if j == 9:
                a('s_cmp_lt_u32 s3, 4')
                lab = f'K2_SW{stage_writes.n}'
                a(f's_cbranch_scc0 {lab}')
            a(f'ds_write_b128 v{VST}, {vr(STG+4*j,4)} offset:{j*8192}' if j < 8 else
              f'ds_write_b128 v{T3}, {vr(STG+4*j,4)} offset:{(j-8)*8192}')
            if j == 9:
                a.label(lab)
                stage_writes.n += 1
    stage_writes.n = 0
    a(f'v_add_u32 v{T3}, 65536, v{VST}')
    stage_loads()
    a('s_lshl_b32 s14, s2, 3')
    a('s_add_u32 s14, s14, s3')
    a('s_mul_i32 s14, s14, 1152')
    a(f'v_mul_u32_u24 v{T0}, 36, v{I}')
    a(f'v_add_u32 v{T0}, s14, v{T0}')
    a(f'v_lshl_add_u32 v{T1}, v{H}, 4, v{T0}')
    a(f'global_load_dwordx4 {vr(Q1,4)}, v{T1}, s[10:11]')
    a(f'global_load_dword v{Q2}, v{T0}, s[10:11] offset:32')
    a(f'v_mov_b32 v{T2}, v{T0}')
    ws_ptr(a, 24, 6, WS_KMAX)
    a(f'v_lshlrev_b32 v{T0}, 2, v{L}')
    a(f'global_load_dword v{VBND}, v{T0}, s[24:25]')
    a(f'v_mov_b32 v{Q2+1}, 0')
    a(f'v_mov_b32 v{Q2+2}, 0')
    a(f'v_mov_b32 v{Q2+3}, 0')
    a('s_mov_b32 s16, -1')
    a('s_mov_b32 s17, 0')
    a('s_mov_b32 s18, 0x3ffff')
    a('s_mov_b32 s19, 0x3ffff')
    a(f'v_lshlrev_b32 v{VK1}, 4, v{L}')
    a(f'v_lshlrev_b32 v{VK2}, 3, v{I}')
    a(f'v_add_u32 v{VK2}, {KF2_OFF}, v{VK2}')
    a(f'v_mul_u32_u24 v{VV}, 18, v{H}')
    a(f'v_add_u32 v{VV}, v{I}, v{VV}')
    a(f'v_lshlrev_b32 v{VV}, 4, v{VV}')
    a(f'v_add_u32 v{VV}, {VF_OFF}, v{VV}')
    for b in range(2):
        for z in range(4): a(f'v_mov_b32 v{KB[b]+z}, 0')
    a(f'v_cmp_eq_u32 vcc, 18, v{I}')
    a(f'v_mov_b32 v{T0}, 0x3f803f80')
    a('s_nop 1')
    a(f'v_cndmask_b32 v{T0}, 0, v{T0}, vcc')
    for b in range(2):
        for i in range(8):
            a(f'v_mov_b32 v{VA[b]+i}, v{T0}')
    for i in range(16):
        a(f'v_mov_b32 v{O+i}, 0')
    a(f'v_mov_b32 v{VM}, 0')
    a(f's_mov_b32 s20, 0xff7fffff')
    stage_writes(0)
    a(f'v_mov_b32 v15, {K2_CNT}')
    a(f'v_mov_b32 v{T0}, 0')
    a(f'ds_write_b32 v15, v{T0}')
    a(f'v_cmp_eq_u32 vcc, 0, v{H}')
    a('s_nop 1')
    a(f'v_cndmask_b32 v{Q2}, 0, v{Q2}, vcc')
    for sh in (1, 2, 4, 8):
        a('s_nop 1')
        a(f'v_max_f32_dpp v{VBND}, v{VBND}, v{VBND} row_ror:{sh} row_mask:0xf bank_mask:0xf')
    a('s_nop 1')
    a(f'v_readlane_b32 s26, v{VBND}, 0')
    a(f'v_readlane_b32 s27, v{VBND}, 16')
    a(f'v_readlane_b32 s28, v{VBND}, 32')
    a(f'v_readlane_b32 s29, v{VBND}, 48')
    a('s_nop 1')
    a(f'v_mov_b32 v{VBND}, s26')
    a(f'v_max_f32 v{VBND}, s27, v{VBND}')
    a(f'v_max_f32 v{VBND}, s28, v{VBND}')
    a(f'v_max_f32 v{VBND}, s29, v{VBND}')
    a(f'v_mov_b32 v{VBND+1}, 0')
    for r in (Q1, Q1+1, Q1+2, Q1+3, Q2):
        a(f'v_lshlrev_b32 v{T0}, 16, v{r}')
        a(f'v_and_b32 v{T1}, 0xffff0000, v{r}')
        a(f'v_add_f32 v{VBND+1}, abs(v{T0}), v{VBND+1}')
        a(f'v_add_f32 v{VBND+1}, abs(v{T1}), v{VBND+1}')
    a(f'v_mov_b32 v{T0}, v{VBND+1}')
    a(f'v_mov_b32 v{T1}, v{VBND+1}')
    a('s_nop 1')
    a(f'v_permlane32_swap_b32 v{T0}, v{T1}')
    a('s_nop 1')
    a(f'v_add_f32 v{T0}, v{T0}, v{T1}')
    a(f'v_mul_f32 v{VBND}, v{VBND}, v{T0}')
    a(f'v_mul_f32 v{VBND}, 0x3f840000, v{VBND}')
    a('s_waitcnt lgkmcnt(0)')
    a('s_barrier')
    stage_loads()
    stamp(a, 1)

    def k_reads(b, off):
        a(f'ds_read_b128 {vr(KA[b],4)}, v{VK1} offset:{off*1024}')
        a('s_mov_b64 exec, s[16:17]')
        a(f'ds_read_b64 {vr(KB[b],2)}, v{VK2} offset:{off*256}')
        a('s_mov_b64 exec, -1')
    def v_reads(b, off):
        a('s_mov_b64 exec, s[18:19]')
        a(f'ds_read_b128 {vr(VA[b],4)}, v{VV} offset:{off*1152}')
        a(f'ds_read_b128 {vr(VA[b]+4,4)}, v{VV} offset:{off*1152+576}')
        a('s_mov_b64 exec, -1')
    def qk(b, sb):
        a(f'v_mfma_f32_32x32x16_bf16 {vr(S[sb],16)}, {vr(KA[b],4)}, {vr(Q1,4)}, 0')
        a(f'v_mfma_f32_32x32x16_bf16 {vr(S[sb],16)}, {vr(KB[b],4)}, {vr(Q2,4)}, {vr(S[sb],16)}')

    def tile_body(ph, b, safe):
        nb = b ^ 1
        Sb = S[b]
        a('s_waitcnt lgkmcnt(2)')
        a(f'v_mfma_f32_32x32x16_bf16 {vr(S[nb],16)}, {vr(KA[nb],4)}, {vr(Q1,4)}, 0')
        if safe:
            a(f'v_max3_f32 v{VMX}, v{Sb}, v{Sb+1}, v{Sb+2}')
            for i in range(3, 9, 2):
                a(f'v_max3_f32 v{VMX}, v{VMX}, v{Sb+i}, v{Sb+i+1}')
            a(f'v_mfma_f32_32x32x16_bf16 {vr(S[nb],16)}, {vr(KB[nb],4)}, {vr(Q2,4)}, {vr(S[nb],16)}')
            for i in range(9, 15, 2):
                a(f'v_max3_f32 v{VMX}, v{VMX}, v{Sb+i}, v{Sb+i+1}')
            a(f'v_max_f32 v{VMX}, v{VMX}, v{Sb+15}')
            a(f'v_cmp_lt_f32 vcc, s20, v{VMX}')
            a(f's_cbranch_vccnz K2_SLOW_{ph}_{b}')
            a.label(f'K2_BACK_{ph}_{b}')
            for i in range(8):
                a(f'v_exp_f32 v{Sb+i}, v{Sb+i}')
        else:
            for i in range(4):
                a(f'v_exp_f32 v{Sb+i}, v{Sb+i}')
            a(f'v_mfma_f32_32x32x16_bf16 {vr(S[nb],16)}, {vr(KB[nb],4)}, {vr(Q2,4)}, {vr(S[nb],16)}')
            for i in range(4, 8):
                a(f'v_exp_f32 v{Sb+i}, v{Sb+i}')
        k_reads(b, b + 2)
        v_reads(nb, b + 1)
        for i in range(4):
            a(f'v_cvt_pk_bf16_f32 v{P+i}, v{Sb+2*i}, v{Sb+2*i+1}')
        for i in range(8, 12):
            a(f'v_exp_f32 v{Sb+i}, v{Sb+i}')
        a('s_waitcnt lgkmcnt(4)')
        a(f'v_mfma_f32_32x32x16_bf16 {vr(O,16)}, {vr(VA[b],4)}, {vr(P,4)}, {vr(O,16)}')
        for i in range(12, 16):
            a(f'v_exp_f32 v{Sb+i}, v{Sb+i}')
        a('s_nop 0')
        for i in range(4, 8):
            a(f'v_cvt_pk_bf16_f32 v{P+i}, v{Sb+2*i}, v{Sb+2*i+1}')
        a('s_nop 1')
        a(f'v_mfma_f32_32x32x16_bf16 {vr(O,16)}, {vr(VA[b]+4,4)}, {vr(P+4,4)}, {vr(O,16)}')
    def loop_tail():
        a(f'v_add_u32 v{VK1}, 2048, v{VK1}')
        a(f'v_add_u32 v{VK2}, 512, v{VK2}')
        a(f'v_add_u32 v{VV}, 2304, v{VV}')
        a('s_add_u32 s21, s21, 1')
        a('s_cmp_lt_u32 s21, 16')
    a('s_mov_b32 s23, 0')
    for phase in range(2):
        ph = f'P{phase}'
        k_reads(0, 0)
        k_reads(1, 1)
        v_reads(0, 0)
        a('s_waitcnt lgkmcnt(4)')
        qk(0, 0)
        a('s_nop 15')
        a('s_mov_b32 s21, 0')
        a('s_cmp_eq_u32 s23, 1')
        a(f's_cbranch_scc1 K2_FLOOP_{ph}')
        a.label(f'K2_LOOP_{ph}')
        for b in range(2):
            tile_body(ph, b, True)
        a(f'v_sub_f32 v{T0}, v{VBND}, v{VM}')
        a(f'v_cmp_nle_f32 vcc, v{T0}, 0x42700000' if False else f'v_cmp_lt_f32 vcc, 0x42700000, v{T0}')
        a(f'v_cmp_u_f32 s[26:27], v{T0}, v{T0}')
        a('s_or_b64 vcc, vcc, s[26:27]')
        a('s_cmp_eq_u64 vcc, 0')
        a('s_cselect_b32 s23, 1, 0')
        loop_tail()
        a(f's_cbranch_scc0 K2_LX_{ph}')
        a('s_cmp_eq_u32 s23, 1')
        a(f's_cbranch_scc0 K2_LOOP_{ph}')
        a.label(f'K2_FLOOP_{ph}')
        for b in range(2):
            tile_body(ph, b, False)
        loop_tail()
        a(f's_cbranch_scc1 K2_FLOOP_{ph}')
        a.label(f'K2_LX_{ph}')
        stamp(a, 2+2*phase)
        if phase == 0:
            def lds_sync(k):
                a('s_waitcnt lgkmcnt(0)')
                a(f'v_mov_b32 v{T0}, 1')
                a(f'ds_add_u32 v15, v{T0}')
                a.label(f'K2_SPIN{k}')
                a(f'ds_read_b32 v{T0}, v15')
                a('s_waitcnt lgkmcnt(0)')
                a(f'v_readfirstlane_b32 s22, v{T0}')
                a(f's_cmp_ge_u32 s22, {512*k}')
                a(f's_cbranch_scc1 K2_SPINX{k}')
                a('s_sleep 1')
                a(f's_branch K2_SPIN{k}')
                a.label(f'K2_SPINX{k}')
            lds_sync(1)
            stage_writes(0)
            a(f'v_subrev_u32 v{VK1}, {16*2048}, v{VK1}')
            a(f'v_subrev_u32 v{VK2}, {16*512}, v{VK2}')
            a(f'v_subrev_u32 v{VV}, {16*2304}, v{VV}')
            lds_sync(2)
            stamp(a, 3)
    a('s_branch K2_FIN')
    for phase in range(2):
        ph = f'P{phase}'
        for b in range(2):
            nb = b ^ 1
            Sb, Sn = S[b], S[nb]
            a.label(f'K2_SLOW_{ph}_{b}')
            a(f'v_mov_b32 v{T0}, v{VMX}')
            a(f'v_mov_b32 v{T1}, v{VMX}')
            a('s_nop 1')
            a(f'v_permlane32_swap_b32 v{T0}, v{T1}')
            a('s_nop 1')
            a(f'v_max_f32 v{T0}, v{T0}, v{T1}')
            a('s_cmp_lt_i32 s20, 0')
            a(f's_cbranch_scc1 K2_SL1_{ph}_{b}')
            a(f'v_max_f32 v{T0}, 0, v{T0}')
            a.label(f'K2_SL1_{ph}_{b}')
            a(f's_mov_b32 s20, {f32bits(THR)}')
            a(f'v_add_f32 v{T1}, v{VM}, v{T0}')
            bf16r(a, T1, T0)
            a(f'v_sub_f32 v{T0}, v{T1}, v{VM}')
            a(f'v_mov_b32 v{VM}, v{T1}')
            a('s_nop 15')
            a('s_nop 7')
            for i in range(16):
                a(f'v_sub_f32 v{Sb+i}, v{Sb+i}, v{T0}')
                a(f'v_sub_f32 v{Sn+i}, v{Sn+i}, v{T0}')
            a(f'v_sub_f32 v{T0}, 0, v{T0}')
            a(f'v_exp_f32 v{T0}, v{T0}')
            a('s_nop 0')
            for i in range(16):
                a(f'v_mul_f32 v{O+i}, v{O+i}, v{T0}')
            a(f'v_xor_b32 v{T1}, 0x80000000, v{T1}')
            a(f'v_lshrrev_b32 v{T1}, 16, v{T1}')
            a('s_mov_b64 exec, s[16:17]')
            a(f'v_mov_b32 v{Q2+1}, v{T1}')
            a('s_mov_b64 exec, -1')
            a('s_nop 1')
            a(f's_branch K2_BACK_{ph}_{b}')
    a.label('K2_FIN')
    a('s_nop 15')
    a('s_nop 3')
    a(f'v_mov_b32 v{T0}, v{O+10}')
    a(f'v_mov_b32 v{T1}, v{O+10}')
    a('s_nop 1')
    a(f'v_permlane32_swap_b32 v{T0}, v{T1}')
    a('s_nop 1')
    a(f'v_rcp_f32 v{T0}, v{T0}')
    a('s_nop 0')
    for i in range(10):
        a(f'v_mul_f32 v{O+i}, v{O+i}, v{T0}')
    for i in range(0, 10, 2):
        a(f'v_cvt_pk_bf16_f32 v{P+i//2}, v{O+i}, v{O+i+1}')
    a(f'v_lshl_add_u32 v{T1}, v{H}, 3, v{T2}')
    a(f'global_store_dwordx2 v{T1}, {vr(P,2)}, s[12:13]')
    a(f'global_store_dwordx2 v{T1}, {vr(P+2,2)}, s[12:13] offset:16')
    a('s_mov_b64 exec, s[16:17]')
    a(f'global_store_dword v{T1}, v{P+4}, s[12:13] offset:32')
    if INSTR:
        a('s_memtime s[70:71]')
        a('s_cmp_lt_u32 s2, 1')
        a('s_cbranch_scc0 K2_END')
        a('s_mov_b32 s74, s3')
        dump_stamps(a, 5, None, None)
    tl_end(a, 1); a('s_endpgm')

    a.label('K2_CONV')
    a('s_sub_u32 s3, s3, 8')
    a('s_lshl_b32 s14, s3, 8')
    a('s_add_u32 s14, s14, s2')
    a('s_cmp_ge_u32 s14, 576')
    a('s_cbranch_scc1 K2_END2')
    L, H, I = 1, 2, 3
    VA_, VB_ = 4, 5
    a(f'v_and_b32 v{L}, 63, v0')
    a(f'v_lshrrev_b32 v{H}, 5, v{L}')
    a(f'v_and_b32 v{I}, 31, v{L}')
    a('s_waitcnt lgkmcnt(0)')
    ws_ptr(a, 8, 6, WS_KT)
    ws_ptr(a, 10, 6, WS_UT)
    ws_ptr(a, 12, 6, WS_YT)
    a(f's_mul_i32 s15, s3, {CONV_SZ}')
    a(f's_add_u32 s15, s15, {CONV_LDS0}')
    a(f'v_lshlrev_b32 v6, 4, v{L}')
    a('s_mov_b32 s24, 0x3ff')
    a('s_mov_b32 s25, 0')
    a(f's_mul_i32 s16, s14, {KT_ROW}')
    a(f'v_add_u32 v9, s15, v6')
    for c in range(NCP):
        b, off = c & 1, 4*(c >> 1)
        a(f's_add_u32 s17, s16, {b*KT_HALF + off}')
        a(f'v_add_u32 v7, s17, v6')
        for j in range(4):
            a(f'global_load_dwordx4 {vr(16 + c*20 + 4*j,4)}, v7, s[8:9] offset:{j*1024}')
        a(f'v_add_u32 v7, 4096, v7')
        a(f'global_load_dwordx4 {vr(16 + c*20 + 16,4)}, v7, s[8:9]')
    a('s_lshl_b32 s17, s14, 12')
    a('v_add_u32 v7, s17, v6')
    for j in range(4):
        a(f'global_load_dwordx4 {vr(96+4*j,4)}, v7, s[10:11] offset:{j*1024}')
    a('s_barrier')
    for i in range(4):
        a(f'v_mov_b32 v{112+i}, 0')
    a(f'ds_write_b128 v9, v[112:115] offset:{NCP*CS}')
    a(f'ds_write_b128 v9, v[112:115] offset:{NCP*CS+1024}')
    a('s_waitcnt vmcnt(0)')
    for c in range(NCP):
        for j in range(4):
            a(f'ds_write_b128 v9, {vr(16 + c*20 + 4*j,4)} offset:{c*CS + j*1024}')
    a('s_mov_b64 exec, s[24:25]')
    for c in range(NCP):
        a(f'ds_write_b128 v9, {vr(16 + c*20 + 16,4)} offset:{c*CS + 4096}')
    a('s_mov_b64 exec, -1')
    for j in range(4):
        a(f'ds_write_b128 v9, {vr(96+4*j,4)} offset:{NCP*CS + 2048 + j*1024}')
    a(f'v_lshlrev_b32 v10, 3, v{H}')
    a(f'v_sub_u32 v10, v10, v{I}')
    a(f'v_add_u32 v10, 2047, v10')
    a(f'v_and_b32 v11, 3, v10')
    a(f'v_sub_u32 v10, v10, v11')
    a(f'v_lshlrev_b32 v10, 1, v10')
    a(f's_movk_i32 s17, {CS}')
    a(f'v_mul_lo_u32 v11, v11, s17')
    a(f'v_add3_u32 v{VA_}, v10, v11, s15')
    a(f'v_lshlrev_b32 v{VB_}, 6, v{I}')
    a(f'v_lshl_add_u32 v{VB_}, v{H}, 4, v{VB_}')
    a(f'v_add_u32 v{VB_}, s15, v{VB_}')
    a(f'v_add_u32 v{VB_}, {NCP*CS + 2048}, v{VB_}')
    Y = [64, 80]
    FA = [16, 24]
    FBq = [32, 48]
    for i in range(32):
        a(f'v_mov_b32 v{64+i}, 0')
    a('s_waitcnt lgkmcnt(0)')
    def reads(buf, both):
        a(f'ds_read2_b64 {vr(FA[buf],4)}, v{VA_} offset0:0 offset1:1')
        a(f'ds_read2_b64 {vr(FA[buf]+4,4)}, v{VA_} offset0:4 offset1:5')
        if both:
            a(f'ds_read_b128 {vr(FBq[buf],4)}, v{VB_}')
            a(f'ds_read_b128 {vr(FBq[buf]+4,4)}, v{VB_} offset:32')
        a(f'ds_read_b128 {vr(FBq[buf]+8,4)}, v{VB_} offset:2048')
        a(f'ds_read_b128 {vr(FBq[buf]+12,4)}, v{VB_} offset:2080')
        a(f'v_subrev_u32 v{VA_}, 64, v{VA_}')
        a(f'v_subrev_u32 v{VB_}, 64, v{VB_}')
    def mfmas(buf, both):
        if both:
            a(f'v_mfma_f32_32x32x16_bf16 {vr(Y[0],16)}, {vr(FA[buf],4)}, {vr(FBq[buf],4)}, {vr(Y[0],16)}')
            a(f'v_mfma_f32_32x32x16_bf16 {vr(Y[0],16)}, {vr(FA[buf]+4,4)}, {vr(FBq[buf]+4,4)}, {vr(Y[0],16)}')
        a(f'v_mfma_f32_32x32x16_bf16 {vr(Y[1],16)}, {vr(FA[buf],4)}, {vr(FBq[buf]+8,4)}, {vr(Y[1],16)}')
        a(f'v_mfma_f32_32x32x16_bf16 {vr(Y[1],16)}, {vr(FA[buf]+4,4)}, {vr(FBq[buf]+12,4)}, {vr(Y[1],16)}')
    reads(0, True)
    a('s_mov_b32 s17, 0')
    a.label('K2_CV1')
    reads(1, True)
    a('s_waitcnt lgkmcnt(6)')
    mfmas(0, True)
    a('s_add_u32 s17, s17, 1')
    a('s_cmp_lt_u32 s17, 16')
    a('s_cbranch_scc0 K2_CV1X')
    reads(0, True)
    a('s_waitcnt lgkmcnt(6)')
    mfmas(1, True)
    a('s_branch K2_CV1')
    a.label('K2_CV1X')
    reads(0, False)
    a('s_waitcnt lgkmcnt(4)')
    mfmas(1, True)
    a('s_mov_b32 s17, 0')
    a.label('K2_CV2')
    reads(1, False)
    a('s_waitcnt lgkmcnt(4)')
    mfmas(0, False)
    a('s_add_u32 s17, s17, 1')
    a('s_cmp_lt_u32 s17, 16')
    a('s_cbranch_scc0 K2_CV2X')
    reads(0, False)
    a('s_waitcnt lgkmcnt(4)')
    mfmas(1, False)
    a('s_branch K2_CV2')
    a.label('K2_CV2X')
    a('s_waitcnt lgkmcnt(0)')
    mfmas(1, False)
    a('s_nop 15')
    a('s_nop 3')
    a(f'v_lshlrev_b32 v10, 6, v{I}')
    a(f'v_lshl_add_u32 v10, v{H}, 3, v10')
    a('s_lshl_b32 s16, s14, 12')
    a('v_add_u32 v10, s16, v10')
    for ct in range(2):
        for q in range(4):
            y = Y[ct] + 4*q
            a(f'v_cvt_pk_bf16_f32 v{y}, v{y}, v{y+1}')
            a(f'v_cvt_pk_bf16_f32 v{y+1}, v{y+2}, v{y+3}')
            a(f'global_store_dwordx2 v10, {vr(y,2)}, s[12:13] offset:{ct*2048 + q*16}')
    a.label('K2_END2')
    a('s_endpgm')
    a.label('K2_END')
    tl_end(a, 1); a('s_endpgm')

K3_GRID = 192
K3_LDS = GEMM_LDS
def gen_k3(a):
    kernel_header(a, 'outp_kernel')
    tl_start(a)
    stamp(a, 0)
    a('s_movk_i32 s90, 0x7fff')
    a(f's_cmp_ge_u32 s2, {K3_GRID}')
    a('s_cbranch_scc1 K3_END')
    load_ptr(a, 6, A_WS); load_ptr(a, 8, A_WO); load_ptr(a, 10, A_DSKIP); load_ptr(a, 18, A_OUT)
    gemm_tile_map(a, 's2')
    gemm_lane_setup(a)
    gemm_a_setup(a, 12)
    a(f's_mov_b32 s86, {TRN_OFF}')
    a('s_waitcnt lgkmcnt(0)')
    stamp(a, 1)
    ws_ptr(a, 16, 6, WS_O)
    ws_ptr(a, 20, 6, WS_G)
    ws_ptr(a, 22, 6, WS_YT)
    ws_ptr(a, 24, 6, WS_UT)
    GV, YV, UV, DS = 208, 216, 228, 240
    R0 = 243
    gemm_stage_b_dma(a, 8, 13, 'K3')
    for ks in range(6):
        a_load(a, 16, ks)
    a(f'v_lshlrev_b32 v{R0}, 5, {vr(G_W)}')
    a(f'v_lshl_add_u32 v{R0}, {vr(G_G)}, 2, v{R0}')
    a(f'v_add_u32 v{R0}, s12, v{R0}')
    a(f'v_add_u32 v13, s13, {vr(G_I)}')
    a(f'v_lshlrev_b32 v14, 12, v13')
    a(f'v_lshl_add_u32 v14, v{R0}, 1, v14')
    a(f'v_add_u32 v15, 65536, v14')
    a(f'v_add_u32 v244, 65536, v15')
    a(f'v_lshlrev_b32 v13, 1, v13')
    a(f'v_lshlrev_b32 v245, 2, v{R0}')
    ex = []
    for mt in range(2):
        ex.append(lambda mt=mt: a(f'global_load_dwordx4 {vr(GV+4*mt,4)}, v245, s[20:21] offset:{mt*64}'))
    for nt in range(3):
        ex.append(lambda nt=nt: a(f'global_load_ushort v{DS+nt}, v13, s[10:11] offset:{32*nt}'))
    for nt in range(3):
        va = (14, 15, 244)[nt]
        for mt in range(2):
            ex.append(lambda nt=nt, mt=mt, va=va: a(f'global_load_dwordx2 {vr(YV+4*nt+2*mt,2)}, v{va}, s[22:23] offset:{mt*32}'))
            ex.append(lambda nt=nt, mt=mt, va=va: a(f'global_load_dwordx2 {vr(UV+4*nt+2*mt,2)}, v{va}, s[24:25] offset:{mt*32}'))
    stamp(a, 2)
    gemm_tr_setup(a)
    a('s_waitcnt vmcnt(12)')
    a('s_barrier')
    stamp(a, 3)
    gemm_main(a, 16, extra=ex)
    stamp(a, 4)
    a('s_waitcnt vmcnt(0)')
    for nt in range(3):
        a(f'v_lshlrev_b32 v{DS+nt}, 16, v{DS+nt}')
    TT = G_ABUF
    for i in range(8):
        a(f'v_sub_f32 v{TT+8+i}, 1.0, v{GV+i}')
    for mt in range(2):
        for nt in range(3):
            for ii in range(4):
                b = G_ACC + 12*mt + 4*nt + ii
                u = TT + 2
                ureg = UV + 4*nt + 2*mt + (ii >> 1)
                yreg = YV + 4*nt + 2*mt + (ii >> 1)
                if ii & 1:
                    a(f'v_and_b32 v{u}, 0xffff0000, v{ureg}')
                    a(f'v_and_b32 v{TT+1}, 0xffff0000, v{yreg}')
                else:
                    a(f'v_lshlrev_b32 v{u}, 16, v{ureg}')
                    a(f'v_lshlrev_b32 v{TT+1}, 16, v{yreg}')
                a(f'v_fma_f32 v{u}, v{u}, v{DS+nt}, v{TT+1}')
                a(f'v_mul_f32 v{b}, v{TT+8+4*mt+ii}, v{b}')
                a(f'v_fma_f32 v{b}, v{GV+4*mt+ii}, v{u}, v{b}')
    gemm_store_tile(a, 18)
    if INSTR:
        a('s_waitcnt vmcnt(0)')
        stamp(a, 5)
        a('s_cmp_lt_u32 s2, 8')
        a('s_cbranch_scc0 K3_END')
        a('s_cmp_eq_u32 s89, 0')
        a('s_cbranch_scc0 K3_END')
        a('s_mov_b32 s74, s2')
        dump_stamps(a, 5, None, None)
    tl_end(a, 2)
    a.label('K3_END')
    a('s_endpgm')

def main(outpath):
    hdr = open('gated_mix__ssm_conv_s4d__grouped_kv_mqa__prompt.s.ref').read().split('\n')
    head = [l for l in hdr if l.startswith(';') and '@launch' not in l and 'Override launch' not in l and 'grid=ceil' not in l]
    out = '\n'.join(head) + '\n'
    out += f'; @launch kernel=prep_kernel grid=({K1_GRID},1,1) block=(256,1,1) lds={K1_LDS}\n'
    out += f'; @launch kernel=attn_kernel grid=({K2_GRID},1,1) block=({K2_THREADS},1,1) lds={K2_LDS}\n'
    out += f'; @launch kernel=outp_kernel grid=({K3_GRID},1,1) block=(256,1,1) lds={K3_LDS}\n'
    out += '.amdgcn_target "amdgcn-amd-amdhsa--gfx950"\n'
    a = Asm()
    gen_k1(a); gen_k2(a); gen_k3(a)
    out += a.text()
    out += kernel_desc('prep_kernel', 216)
    out += kernel_desc('attn_kernel', 160)
    out += kernel_desc('outp_kernel', 248)
    open(outpath, 'w').write(out)

if __name__ == '__main__':
    if len(sys.argv) > 2 and sys.argv[2] == 'instr': INSTR = True
    if len(sys.argv) > 2 and sys.argv[2] == 'tl': TL = True
    main(sys.argv[1] if len(sys.argv) > 1 else 'gated_mix__ssm_conv_s4d__grouped_kv_mqa__prompt.s')
```

```python
import math, sys, struct

WS_Q   = 0
WS_O   = 2359296
WS_KVF = 4718592
PH_BYTES = 81920
PH_USED = 77824
KF1_OFF = 0
KF2_OFF = 32768
VF_OFF  = 40960
WS_G   = 4882432
WS_KMAX = 14483456
WS_KT  = 4890624
KT_HALF = 4224
KT_ROW = 8448
WS_UT  = 12124160
WS_YT  = 9764864

LOG2E = 1.4426950408889634
QSCALE = LOG2E / math.sqrt(18.0)
INSTR = False

def f32bits(x):
    return struct.unpack('<I', struct.pack('<f', x))[0]

class Asm:
    def __init__(self):
        self.lines = []
    def __call__(self, s):
        for ln in s.strip('\n').split('\n'):
            self.lines.append('    ' + ln.strip())
    def label(self, name):
        self.lines.append(name + ':')
    def raw(self, s):
        self.lines.append(s)
    def text(self):
        return '\n'.join(self.lines) + '\n'

def vr(a, n=1):
    return f'v{a}' if n == 1 else f'v[{a}:{a+n-1}]'
def sr(a, n=1):
    return f's{a}' if n == 1 else f's[{a}:{a+n-1}]'

TL = False
def tl_start(a):
    if TL:
        a('s_memrealtime s[80:81]')
def tl_end(a, kidx):
    if TL:
        a('s_memrealtime s[82:83]')
        load_ptr(a, 84, A_WS)
        a('s_waitcnt lgkmcnt(0) vmcnt(0)')
        a('s_mov_b64 exec, -1')
        a('v_cmp_eq_u32 vcc, 0, v0')
        a('s_and_saveexec_b64 s[86:87], vcc')
        a(f's_lshl_b32 s78, s2, 4')
        a(f's_add_u32 s78, s78, {0x3000000 + kidx*0x10000}')
        a('v_mov_b32 v1, s78')
        a('v_mov_b32 v2, s80')
        a('v_mov_b32 v3, s82')
        a('global_store_dwordx2 v1, v[2:3], s[84:85]')

def kernel_header(a, name):
    a.raw('.text')
    a.raw(f'.globl {name}')
    a.raw('.p2align 8')
    a.raw(f'.type {name},@function')
    a.label(name)

def kernel_desc(name, vgpr, sgpr=96):
    acc = (vgpr + 3) // 4 * 4
    return f'''.section .rodata,"a"
.p2align 6
.amdhsa_kernel {name}
  .amdhsa_next_free_vgpr {vgpr}
  .amdhsa_next_free_sgpr {sgpr}
  .amdhsa_accum_offset {acc}
  .amdhsa_group_segment_fixed_size 0
  .amdhsa_kernarg_size 128
  .amdhsa_user_sgpr_count 2
  .amdhsa_user_sgpr_kernarg_segment_ptr 1
  .amdhsa_system_sgpr_workgroup_id_x 1
.end_amdhsa_kernel
'''

A_U, A_LOGA, A_AIM, A_CRE, A_CIM, A_LOGDT, A_DSKIP, A_BX, A_WQ, A_WK, A_WV, A_WO, A_GW, A_OUT, A_DBG, A_WS = range(16)

def load_ptr(a, sdst, slot):
    a(f's_load_dwordx2 {sr(sdst,2)}, s[0:1], {slot*8}')
def ws_ptr(a, sdst, sws, off):
    a(f's_add_u32 {sr(sdst)}, {sr(sws)}, {off}')
    a(f's_addc_u32 {sr(sdst+1)}, {sr(sws+1)}, 0')
def bf16r(a, v, tmp):
    a(f'v_bfe_u32 {vr(tmp)}, {vr(v)}, 16, 1')
    a(f'v_add3_u32 {vr(v)}, {vr(v)}, {vr(tmp)}, s90')
    a(f'v_and_b32 {vr(v)}, 0xffff0000, {vr(v)}')
def div_const(a, sq, srem, ssrc, c, stmp):
    magic = (2**32 + c - 1)//c
    a(f's_mov_b32 {sr(stmp)}, {magic}')
    a(f's_mul_hi_u32 {sr(sq)}, {sr(ssrc)}, {sr(stmp)}')
    a(f's_mul_i32 {sr(stmp)}, {sr(sq)}, {c}')
    a(f's_sub_u32 {sr(srem)}, {sr(ssrc)}, {sr(stmp)}')
def stamp(a, k):
    if INSTR:
        a(f's_memtime s[{60+2*k}:{61+2*k}]')
def dump_stamps(a, n, cond_label, slot_sgpr_expr):
    load_ptr(a, 72, A_DBG)
    a('s_waitcnt lgkmcnt(0)')
    a('s_lshl_b32 s74, s74, 5')
    a('v_mov_b32 v1, s74')
    for k in range(1, n+1):
        a(f's_sub_u32 s75, s{60+2*k}, s60')
        a('v_mov_b32 v2, s75')
        a(f'global_store_dword v1, v2, s[72:73] offset:{4*k}')

G_L, G_G, G_I, G_W, G_AOFF, G_BOFF, G_LDS, G_TR, G_T0, G_T1, G_T2, G_T3 = range(1, 13)
NT = 3
G_BF = 16
G_ACC = 40
G_ABUF = 64
G_FREE = 208
BT_BYTES = 576*96
TRN_OFF = BT_BYTES
GEMM_LDS = BT_BYTES + 4*3072

def gemm_lane_setup(a):
    a(f'v_and_b32 {vr(G_L)}, 63, v0')
    a(f'v_lshrrev_b32 {vr(G_W)}, 6, v0')
    a(f'v_lshrrev_b32 {vr(G_G)}, 4, {vr(G_L)}')
    a(f'v_and_b32 {vr(G_I)}, 15, {vr(G_L)}')
    a('s_movk_i32 s91, 1152')
    a(f'v_readfirstlane_b32 s89, {vr(G_W)}')

def gemm_tile_map(a, src):
    a(f's_and_b32 s15, {src}, 7')
    a(f's_lshr_b32 s3, {src}, 3')
    div_const(a, 12, 13, 3, 12, 14)
    a('s_lshl_b32 s12, s12, 3')
    a('s_add_u32 s12, s12, s15')
    a('s_lshl_b32 s12, s12, 7')
    a('s_mul_i32 s13, s13, 48')

def gemm_a_setup(a, s_m0):
    a(f'v_lshl_add_u32 {vr(G_AOFF)}, {vr(G_W)}, 5, {vr(G_I)}')
    a(f'v_add_u32 {vr(G_AOFF)}, {sr(s_m0)}, {vr(G_AOFF)}')
    a(f'v_mul_lo_u32 {vr(G_AOFF)}, {vr(G_AOFF)}, s91')
    a(f'v_lshl_add_u32 {vr(G_AOFF)}, {vr(G_G)}, 4, {vr(G_AOFF)}')
    a(f'v_add_u32 {vr(G_LDS)}, {16*1152}, {vr(G_AOFF)}')

def a_load(a, sA, ks):
    base = G_ABUF + ks*8
    a(f'global_load_dwordx4 {vr(base, 4)}, {vr(G_AOFF)}, {sr(sA,2)} offset:{ks*64}')
    a(f'global_load_dwordx4 {vr(base+4, 4)}, {vr(G_LDS)}, {sr(sA,2)} offset:{ks*64}')

def gemm_stage_b_dma(a, sB, s_n0, tag):
    a(f's_lshl_b32 s92, {sr(s_n0)}, 1')
    a('s_lshl_b32 s88, s89, 10')
    a(f's_mov_b32 s87, {(2**32 + 5)//6}')
    for j in range(14):
        if j == 13:
            a('s_cmp_lt_u32 s89, 2')
            a(f's_cbranch_scc0 {tag}_B13')
        a(f'v_add_u32 {vr(G_T0)}, {256*j}, v0')
        a(f'v_mul_hi_u32 {vr(G_T1)}, {vr(G_T0)}, s87')
        a(f'v_mul_u32_u24 {vr(G_T2)}, 6, {vr(G_T1)}')
        a(f'v_sub_u32 {vr(G_T2)}, {vr(G_T0)}, {vr(G_T2)}')
        a(f'v_mul_lo_u32 {vr(G_BOFF)}, {vr(G_T1)}, s91')
        a(f'v_lshl_add_u32 {vr(G_BOFF)}, {vr(G_T2)}, 4, {vr(G_BOFF)}')
        a(f'v_add_u32 {vr(G_BOFF)}, s92, {vr(G_BOFF)}')
        a(f's_add_u32 m0, s88, {j*4096}')
        a('s_nop 0')
        a(f'global_load_lds_dwordx4 {vr(G_BOFF)}, {sr(sB,2)}')
    a.label(f'{tag}_B13')

def gemm_tr_setup(a):
    a(f'v_lshrrev_b32 {vr(G_T1)}, 2, {vr(G_I)}')
    a(f'v_lshl_add_u32 {vr(G_T1)}, {vr(G_G)}, 3, {vr(G_T1)}')
    a(f'v_mul_u32_u24 {vr(G_TR)}, 96, {vr(G_T1)}')
    a(f'v_and_b32 {vr(G_T0)}, 3, {vr(G_I)}')
    a(f'v_lshl_add_u32 {vr(G_TR)}, {vr(G_T0)}, 3, {vr(G_TR)}')

def gemm_main(a, sA, swap=False, pre=6, extra=None):
    extra = list(extra or [])
    def tr_reads(ks):
        off = ks*3072
        dst = G_BF + (ks % 2)*12
        for nt in range(NT):
            a(f'ds_read_b64_tr_b16 {vr(dst+4*nt,2)}, {vr(G_TR)} offset:{off + 32*nt}')
            a(f'ds_read_b64_tr_b16 {vr(dst+4*nt+2,2)}, {vr(G_TR)} offset:{off + 32*nt + 384}')
    issued = 2*pre
    pos = {ks: 2*ks + 2 for ks in range(pre)}
    tr_reads(0)
    for ks in range(18):
        if ks + 1 < 18:
            tr_reads(ks + 1)
        for _ in range(3):
            if extra:
                extra.pop(0)(); issued += 1
        if ks + pre < 18:
            a_load(a, sA, ks + pre); issued += 2; pos[ks + pre] = issued
        vm = min(63, issued - pos[ks])
        a(f's_waitcnt vmcnt({vm}) lgkmcnt({6 if ks + 1 < 18 else 0})')
        for mt in range(2):
            for nt in range(NT):
                X, W = vr(G_ABUF + ks*8 + 4*mt, 4), vr(G_BF + (ks % 2)*12 + 4*nt, 4)
                D = vr(G_ACC + 12*mt + 4*nt, 4)
                C = D if ks else '0'
                if swap:
                    a(f'v_mfma_f32_16x16x32_bf16 {D}, {W}, {X}, {C}')
                else:
                    a(f'v_mfma_f32_16x16x32_bf16 {D}, {X}, {W}, {C}')
    while extra:
        extra.pop(0)()
    a('s_nop 15')

def gemm_store_tile(a, sOut):
    a(f'v_mul_u32_u24 {vr(G_T0)}, {3072}, {vr(G_W)}')
    a(f'v_mul_u32_u24 {vr(G_T1)}, 384, {vr(G_G)}')
    a(f'v_add3_u32 {vr(G_T0)}, {vr(G_T0)}, {vr(G_T1)}, s86')
    a(f'v_lshl_add_u32 {vr(G_T1)}, {vr(G_I)}, 1, {vr(G_T0)}')
    for mt in range(2):
        for nt in range(NT):
            r0 = G_ACC + 12*mt + 4*nt
            a(f'v_cvt_pk_bf16_f32 v{r0}, v{r0}, v{r0+1}')
            a(f'v_cvt_pk_bf16_f32 v{r0+2}, v{r0+2}, v{r0+3}')
            for r in range(4):
                off = (16*mt + r)*96 + 32*nt
                src = r0 + (r & 2)
                op = 'ds_write_b16_d16_hi' if r & 1 else 'ds_write_b16'
                a(f'{op} {vr(G_T1)}, v{src} offset:{off}')
    a(f's_mov_b32 s87, {(2**32 + 5)//6}')
    a(f'v_mul_u32_u24 {vr(G_T0)}, {3072}, {vr(G_W)}')
    a(f'v_add_u32 {vr(G_T0)}, s86, {vr(G_T0)}')
    a(f'v_lshl_add_u32 {vr(G_T0)}, {vr(G_L)}, 4, {vr(G_T0)}')
    a('s_waitcnt lgkmcnt(0)')
    for j in range(3):
        a(f'ds_read_b128 {vr(G_ABUF+4*j,4)}, {vr(G_T0)} offset:{j*1024}')
    a(f'v_lshlrev_b32 {vr(G_T3)}, 5, {vr(G_W)}')
    a(f'v_add_u32 {vr(G_T3)}, s12, {vr(G_T3)}')
    a(f's_lshl_b32 s92, s13, 1')
    for j in range(3):
        a(f'v_add_u32 {vr(G_T0)}, {64*j}, {vr(G_L)}')
        a(f'v_mul_hi_u32 {vr(G_T1)}, {vr(G_T0)}, s87')
        a(f'v_mul_u32_u24 {vr(G_T2)}, 6, {vr(G_T1)}')
        a(f'v_sub_u32 {vr(G_T2)}, {vr(G_T0)}, {vr(G_T2)}')
        a(f'v_add_u32 {vr(G_T1)}, {vr(G_T3)}, {vr(G_T1)}')
        a(f'v_mul_lo_u32 {vr(G_T1)}, {vr(G_T1)}, s91')
        a(f'v_lshl_add_u32 {vr(G_T1)}, {vr(G_T2)}, 4, {vr(G_T1)}')
        a(f'v_add_u32 {vr(G_T1)}, s92, {vr(G_T1)}')
        a(f's_waitcnt lgkmcnt({2-j})')
        a(f'global_store_dwordx4 {vr(G_T1)}, {vr(G_ABUF+4*j,4)}, {sr(sOut,2)}')

N_KGEN, N_QP, N_KV, N_UT = 288, 192, 32, 0
KG_CH = 2
K1_GRID = N_KGEN + N_QP + N_KV + N_UT
KG_ROW = 528
K1_LDS = GEMM_LDS

def gen_k1(a):
    kernel_header(a, 'prep_kernel')
    tl_start(a)
    stamp(a, 0)
    a('s_movk_i32 s90, 0x7fff')
    load_ptr(a, 4, A_U)
    load_ptr(a, 6, A_WS)
    a(f's_cmp_lt_u32 s2, {N_KGEN}')
    a('s_cbranch_scc1 K1_KGEN')
    a(f's_cmp_lt_u32 s2, {N_KGEN+N_QP}')
    a('s_cbranch_scc1 K1_QP')
    a(f's_cmp_lt_u32 s2, {N_KGEN+N_QP+N_KV}')
    a('s_cbranch_scc1 K1_KV')
    a('s_endpgm')

    a.label('K1_QP')
    load_ptr(a, 8, A_WQ)
    a(f's_sub_u32 s24, s2, {N_KGEN}')
    gemm_tile_map(a, 's24')
    gemm_lane_setup(a)
    gemm_a_setup(a, 12)
    a(f's_mov_b32 s86, {TRN_OFF}')
    a('s_waitcnt lgkmcnt(0)')
    gemm_stage_b_dma(a, 8, 13, 'K1QP')
    for ks in range(6):
        a_load(a, 4, ks)
    gemm_tr_setup(a)
    UTR = G_FREE
    a(f's_mov_b32 s87, {(2**32 + 5)//6}')
    a(f's_lshl_b32 s92, s13, 1')
    ex = []
    def ut_load(j):
        a(f'v_add_u32 v13, {64*j}, {vr(G_L)}')
        a(f'v_mul_hi_u32 v14, v13, s87')
        a(f'v_mul_u32_u24 v15, 6, v14')
        a(f'v_sub_u32 v15, v13, v15')
        a(f'v_lshl_add_u32 v13, {vr(G_W)}, 5, v14')
        a(f'v_add_u32 v13, s12, v13')
        a(f'v_mul_lo_u32 v13, v13, s91')
        a(f'v_lshl_add_u32 v13, v15, 4, v13')
        a(f'v_add_u32 v13, s92, v13')
        a(f'global_load_dwordx4 {vr(UTR+4*j,4)}, v13, s[4:5]')
    for j in range(3):
        ex.append(lambda j=j: ut_load(j))
    a('s_waitcnt vmcnt(12)')
    a('s_barrier')
    gemm_main(a, 4, extra=ex)
    a(f'v_mul_u32_u24 {vr(G_T0)}, 3072, {vr(G_W)}')
    a(f'v_add_u32 {vr(G_T0)}, s86, {vr(G_T0)}')
    a(f'v_lshl_add_u32 {vr(G_T1)}, {vr(G_L)}, 4, {vr(G_T0)}')
    a('s_waitcnt vmcnt(0)')
    for j in range(3):
        a(f'ds_write_b128 {vr(G_T1)}, {vr(UTR+4*j,4)} offset:{j*1024}')
    a(f'v_lshrrev_b32 {vr(G_T2)}, 2, {vr(G_I)}')
    a(f'v_mul_u32_u24 {vr(G_T2)}, 96, {vr(G_T2)}')
    a(f'v_lshl_add_u32 {vr(G_T2)}, {vr(G_G)}, 5, {vr(G_T2)}')
    a(f'v_and_b32 {vr(G_T3)}, 3, {vr(G_I)}')
    a(f'v_lshl_add_u32 {vr(G_T2)}, {vr(G_T3)}, 3, {vr(G_T2)}')
    a(f'v_add_u32 {vr(G_T2)}, {vr(G_T0)}, {vr(G_T2)}')
    a('s_waitcnt lgkmcnt(0)')
    UR = G_ABUF
    for e in range(8):
        a(f'ds_read_b64_tr_b16 {vr(UR+2*e,2)}, {vr(G_T2)} offset:{e*384}')
    ws_ptr(a, 16, 6, WS_UT)
    a(f'v_lshl_add_u32 {vr(G_T3)}, {vr(G_G)}, 4, {vr(G_I)}')
    a(f'v_add_u32 {vr(G_T3)}, s13, {vr(G_T3)}')
    a(f'v_lshlrev_b32 {vr(G_T3)}, 12, {vr(G_T3)}')
    a(f'v_lshlrev_b32 {vr(G_T1)}, 5, {vr(G_W)}')
    a(f'v_add_u32 {vr(G_T1)}, s12, {vr(G_T1)}')
    a(f'v_lshl_add_u32 {vr(G_T3)}, {vr(G_T1)}, 1, {vr(G_T3)}')
    a(f'v_cmp_gt_u32 vcc, 3, {vr(G_G)}')
    a('s_waitcnt lgkmcnt(0)')
    a('s_and_saveexec_b64 s[20:21], vcc')
    for q in range(4):
        a(f'global_store_dwordx4 {vr(G_T3)}, {vr(UR+4*q,4)}, s[16:17] offset:{16*q}')
    a('s_mov_b64 exec, s[20:21]')
    ws_ptr(a, 16, 6, WS_Q)
    a(f's_mov_b32 s93, {f32bits(QSCALE)}')
    for r in range(24):
        a(f'v_mul_f32 {vr(G_ACC+r)}, s93, {vr(G_ACC+r)}')
    gemm_store_tile(a, 16)
    tl_end(a, 0); a('s_endpgm')

    a.label('K1_KV')
    load_ptr(a, 8, A_WK)
    load_ptr(a, 10, A_WV)
    load_ptr(a, 18, A_GW)
    a(f's_sub_u32 s3, s2, {N_KGEN+N_QP}')
    a('s_and_b32 s15, s3, 1')
    a('s_lshr_b32 s12, s3, 1')
    a('s_lshl_b32 s12, s12, 7')
    gemm_lane_setup(a)
    gemm_a_setup(a, 12)
    a('s_waitcnt lgkmcnt(0)')
    a('s_cmp_eq_u32 s15, 0')
    a('s_cselect_b32 s8, s8, s10')
    a('s_cselect_b32 s9, s9, s11')
    a(f'v_mov_b32 {vr(G_T3)}, s15')
    a(f'v_cmp_eq_u32 s[24:25], 0, {vr(G_T3)}')
    def w_loads(j, WR):
        a(f'v_add_u32 {vr(G_T0)}, {256*j}, v0')
        a(f'v_mul_u32_u24 {vr(G_T1)}, 36, {vr(G_T0)}')
        a(f'global_load_dwordx4 {vr(WR,4)}, {vr(G_T1)}, s[8:9]')
        a(f'global_load_dwordx4 {vr(WR+4,4)}, {vr(G_T1)}, s[8:9] offset:16')
        a(f'global_load_dword {vr(WR+8)}, {vr(G_T1)}, s[8:9] offset:32')
        a(f'v_lshlrev_b32 {vr(G_T2)}, 1, {vr(G_T0)}')
        a(f'global_load_ushort {vr(WR+9)}, {vr(G_T2)}, s[18:19]')
        for z in range(10, 16):
            a(f'v_mov_b32 {vr(WR+z)}, 0')
    def w_writes(j, WR):
        a(f'v_cndmask_b32 {vr(WR+9)}, 0, {vr(WR+9)}, s[24:25]')
        a(f'v_mul_u32_u24 {vr(G_T2)}, 96, v0')
        for z in range(4):
            a(f'ds_write_b128 {vr(G_T2)}, {vr(WR+4*z,4)} offset:{j*24576 + 16*z}')
        for z in range(4, 6):
            a(f'ds_write_b128 {vr(G_T2)}, {vr(WR+12,4)} offset:{j*24576 + 16*z}')
    w_loads(0, 16); w_loads(1, 32);
    a('s_cmp_eq_u32 s89, 0')
    a('s_cbranch_scc0 K1_KV_N3')
    w_loads(2, 48)
    a('s_waitcnt vmcnt(0)')
    w_writes(2, 48)
    a.label('K1_KV_N3')
    a('s_waitcnt vmcnt(0)')
    w_writes(0, 16); w_writes(1, 32)
    for ks in range(6):
        a_load(a, 4, ks)
    gemm_tr_setup(a)
    a('s_waitcnt lgkmcnt(0)')
    a('s_barrier')
    a(f's_lshr_b32 s13, s12, 5')
    a(f'v_add_u32 {vr(G_T0)}, s13, {vr(G_W)}')
    a(f'v_lshrrev_b32 {vr(G_T1)}, 5, {vr(G_T0)}')
    a(f'v_and_b32 {vr(G_T0)}, 31, {vr(G_T0)}')
    a(f's_mov_b32 s14, {PH_BYTES}')
    a(f'v_mul_lo_u32 v13, {vr(G_T1)}, s14')
    a(f'v_mov_b32 v14, {vr(G_T0)}')
    ws_ptr(a, 16, 6, WS_KVF)
    a('s_cmp_eq_u32 s15, 1')
    a('s_cbranch_scc1 K1_KV_V')
    gemm_main(a, 4, swap=True)
    A0, A1 = G_ACC, G_ACC + 12
    KM = G_FREE
    a(f'v_max3_f32 v{KM}, abs(v{A0}), abs(v{A0+1}), abs(v{A0+2})')
    a(f'v_max3_f32 v{KM}, v{KM}, abs(v{A0+3}), abs(v{A1})')
    a(f'v_max3_f32 v{KM}, v{KM}, abs(v{A1+1}), abs(v{A1+2})')
    a(f'v_max_f32 v{KM}, v{KM}, abs(v{A1+3})')
    a(f'v_max3_f32 v{KM+1}, abs(v{A0+4}), abs(v{A0+5}), abs(v{A1+4})')
    a(f'v_max_f32 v{KM+1}, v{KM+1}, abs(v{A1+5})')
    a(f'v_cmp_eq_u32 vcc, 0, {vr(G_G)}')
    a('s_nop 1')
    a(f'v_cndmask_b32 v{KM+1}, 0, v{KM+1}, vcc')
    a(f'v_max_f32 v{KM}, v{KM}, v{KM+1}')
    for sh in (1, 2, 4, 8):
        a('s_nop 1')
        a(f'v_max_f32_dpp v{KM}, v{KM}, v{KM} row_ror:{sh} row_mask:0xf bank_mask:0xf')
    a('s_nop 1')
    a(f'v_readlane_b32 s26, v{KM}, 0')
    a(f'v_readlane_b32 s27, v{KM}, 16')
    a(f'v_readlane_b32 s28, v{KM}, 32')
    a(f'v_readlane_b32 s29, v{KM}, 48')
    a('s_nop 1')
    a(f'v_mov_b32 v{KM}, s26')
    a(f'v_max_f32 v{KM}, s27, v{KM}')
    a(f'v_max_f32 v{KM}, s28, v{KM}')
    a(f'v_max_f32 v{KM}, s29, v{KM}')
    ws_ptr(a, 26, 6, WS_KMAX)
    a(f'v_mov_b32 v{KM+1}, s13')
    a(f'v_add_u32 v{KM+1}, {vr(G_W)}, v{KM+1}')
    a(f'v_lshlrev_b32 v{KM+1}, 2, v{KM+1}')
    a(f'global_store_dword v{KM+1}, v{KM}, s[26:27]')
    a(f'v_lshl_add_u32 {vr(G_T2)}, v14, 10, v13')
    a(f'v_lshrrev_b32 {vr(G_T3)}, 1, {vr(G_G)}')
    a(f'v_lshl_add_u32 {vr(G_T2)}, {vr(G_T3)}, 9, {vr(G_T2)}')
    a(f'v_lshl_add_u32 {vr(G_T2)}, {vr(G_I)}, 4, {vr(G_T2)}')
    a(f'v_and_b32 {vr(G_T3)}, 1, {vr(G_G)}')
    a(f'v_lshl_add_u32 {vr(G_T2)}, {vr(G_T3)}, 3, {vr(G_T2)}')
    for kt in range(2):
        r = G_ACC + 12*kt
        a(f'v_cvt_pk_bf16_f32 v{r}, v{r}, v{r+1}')
        a(f'v_cvt_pk_bf16_f32 v{r+1}, v{r+2}, v{r+3}')
        a(f'global_store_dwordx2 {vr(G_T2)}, {vr(r,2)}, s[16:17] offset:{KF1_OFF + kt*256}')
    a(f'v_cmp_eq_u32 vcc, 0, {vr(G_G)}')
    a('s_and_saveexec_b64 s[20:21], vcc')
    a(f'v_lshl_add_u32 {vr(G_T2)}, v14, 8, v13')
    a(f'v_lshl_add_u32 {vr(G_T2)}, {vr(G_I)}, 3, {vr(G_T2)}')
    a(f'v_add_u32 {vr(G_T2)}, {KF2_OFF}, {vr(G_T2)}')
    ws_ptr(a, 18, 6, WS_G)
    a(f'v_lshl_add_u32 {vr(G_T1)}, {vr(G_W)}, 5, {vr(G_I)}')
    a(f'v_add_u32 {vr(G_T1)}, s12, {vr(G_T1)}')
    a(f'v_lshlrev_b32 {vr(G_T1)}, 2, {vr(G_T1)}')
    for kt in range(2):
        r = G_ACC + 4 + 12*kt
        a(f'v_cvt_pk_bf16_f32 v{r}, v{r}, v{r+1}')
        a(f'v_mov_b32 v{r+1}, 0x3f80')
        a(f'global_store_dwordx2 {vr(G_T2)}, {vr(r,2)}, s[16:17] offset:{kt*128}')
        bf16r(a, r+2, G_T3)
        a(f'v_mul_f32 v{r+3}, {f32bits(-LOG2E)}, v{r+2}')
        a(f'v_exp_f32 v{r+3}, v{r+3}')
        a('s_nop 0')
        a(f'v_add_f32 v{r+3}, 1.0, v{r+3}')
        a(f'v_rcp_f32 v{r+3}, v{r+3}')
        a('s_nop 0')
        bf16r(a, r+3, G_T3)
        a(f'global_store_dword {vr(G_T1)}, v{r+3}, s[18:19] offset:{kt*64}')
    tl_end(a, 0); a('s_endpgm')
    a.label('K1_KV_V')
    gemm_main(a, 4, swap=False)
    a(f'v_mul_lo_u32 {vr(G_T2)}, v14, s91')
    a(f'v_add_u32 {vr(G_T2)}, v13, {vr(G_T2)}')
    a(f'v_and_b32 {vr(G_T3)}, 1, {vr(G_G)}')
    a(f'v_mul_u32_u24 {vr(G_T3)}, 18, {vr(G_T3)}')
    a(f'v_add_u32 {vr(G_T3)}, {vr(G_I)}, {vr(G_T3)}')
    a(f'v_lshl_add_u32 {vr(G_T2)}, {vr(G_T3)}, 4, {vr(G_T2)}')
    a(f'v_lshrrev_b32 {vr(G_T3)}, 1, {vr(G_G)}')
    a(f'v_lshl_add_u32 {vr(G_T2)}, {vr(G_T3)}, 3, {vr(G_T2)}')
    a(f'v_add_u32 {vr(G_T2)}, {VF_OFF}, {vr(G_T2)}')
    for nt in range(2):
        if nt == 1:
            a(f'v_cmp_gt_u32 vcc, 2, {vr(G_I)}')
            a('s_and_saveexec_b64 s[20:21], vcc')
        for mt in range(2):
            r = G_ACC + 12*mt + 4*nt
            a(f'v_cvt_pk_bf16_f32 v{r}, v{r}, v{r+1}')
            a(f'v_cvt_pk_bf16_f32 v{r+1}, v{r+2}, v{r+3}')
            a(f'global_store_dwordx2 {vr(G_T2)}, {vr(r,2)}, s[16:17] offset:{mt*576 + nt*256}')
    tl_end(a, 0); a('s_endpgm')

    a.label('K1_KGEN')
    load_ptr(a, 8, A_LOGA); load_ptr(a, 10, A_AIM); load_ptr(a, 12, A_CRE); load_ptr(a, 14, A_CIM); load_ptr(a, 16, A_LOGDT)
    L, W = 1, 2
    VDT, A2, BB, CRr, CIi = 4, 5, 6, 7, 8
    ZR, ZI = 10, 11
    FR, FI = 12, 13
    XR, XI = 14, 15
    YR, YI = 16, 17
    VWA, VWB = 9, 18
    T = 20
    a(f'v_and_b32 v{L}, 63, v0')
    a(f'v_lshrrev_b32 v{W}, 6, v0')
    a('s_nop 1')
    a(f'v_readfirstlane_b32 s89, v{W}')
    a(f'v_and_b32 v{T}, 1, v{W}')
    a(f'v_lshl_add_u32 v{T}, v{T}, 6, v{L}')
    a(f'v_lshlrev_b32 v{T+1}, 1, v{T}')
    a('s_mul_i32 s30, s2, 2')
    a('s_lshl_b32 s3, s30, 8')
    a(f'v_add_u32 v{T+1}, s3, v{T+1}')
    a('s_lshl_b32 s3, s30, 1')
    a(f'v_mov_b32 v{T+2}, s3')
    a('s_waitcnt lgkmcnt(0)')
    PR = 120
    for cc in range(KG_CH):
        a(f'global_load_ushort v{PR+5*cc}, v{T+2}, s[16:17] offset:{2*cc}')
        a(f'global_load_ushort v{PR+5*cc+1}, v{T+1}, s[8:9] offset:{256*cc}')
        a(f'global_load_ushort v{PR+5*cc+2}, v{T+1}, s[10:11] offset:{256*cc}')
        a(f'global_load_ushort v{PR+5*cc+3}, v{T+1}, s[12:13] offset:{256*cc}')
        a(f'global_load_ushort v{PR+5*cc+4}, v{T+1}, s[14:15] offset:{256*cc}')
    NB4 = 119
    a(f'v_lshlrev_b32 v{NB4}, 2, v{T}')
    a(f'v_lshlrev_b32 v{T+3}, 2, v{T}')
    a(f's_mov_b32 s20, {f32bits(LOG2E)}')
    a(f's_mov_b32 s21, {f32bits(1.0/(2*math.pi))}')
    a('s_lshr_b32 s22, s89, 1')
    for cc in range(KG_CH):
        a(f's_add_u32 s31, s30, {cc}')
        a(f's_waitcnt vmcnt({0})')
        for k5, v in enumerate((VDT, A2, BB, CRr, CIi)):
            a(f'v_lshlrev_b32 v{v}, 16, v{PR+5*cc+k5}')
        a(f'v_mov_b32 v{T+3}, v{NB4}')
        if cc == 0: stamp(a, 1)
        a(f'v_mul_f32 v{VDT}, s20, v{VDT}')
        a(f'v_mul_f32 v{A2}, s20, v{A2}')
        a(f'v_exp_f32 v{VDT}, v{VDT}')
        a(f'v_exp_f32 v{A2}, v{A2}')
        a('s_nop 0')
        bf16r(a, VDT, T)
        bf16r(a, A2, T)
        a(f'v_mul_f32 v{A2}, v{VDT}, v{A2}')
        a(f'v_mul_f32 v{BB}, v{VDT}, v{BB}')
        a(f'v_mul_f32 v{A2}, s20, v{A2}')
        a(f'v_mul_f32 v{BB}, s21, v{BB}')
        a(f'v_mul_f32 v{CRr}, v{VDT}, v{CRr}')
        a(f'v_mul_f32 v{CIi}, v{VDT}, v{CIi}')
        a(f'v_add_f32 v{CRr}, v{CRr}, v{CRr}')
        a(f'v_add_f32 v{CIi}, v{CIi}, v{CIi}')
        def zpow(dr, di, p, conj):
            a(f'v_mul_f32 v{T}, {f32bits(-float(p))}, v{A2}')
            a(f'v_mul_f32 v{T+1}, {f32bits(float(p))}, v{BB}')
            a(f'v_exp_f32 v{T}, v{T}')
            a(f'v_fract_f32 v{T+1}, v{T+1}')
            a(f'v_cos_f32 v{dr}, v{T+1}')
            a(f'v_sin_f32 v{di}, v{T+1}')
            a('s_nop 0')
            a(f'v_mul_f32 v{dr}, v{T}, v{dr}')
            if conj: a(f'v_mul_f32 v{di}, -v{T}, v{di}')
            else:    a(f'v_mul_f32 v{di}, v{T}, v{di}')
        def cmul_conjC(dr, di, zr, zi):
            a(f'v_mul_f32 v{dr}, v{CRr}, v{zr}')
            a(f'v_mul_f32 v{di}, v{CRr}, v{zi}')
            a(f'v_fma_f32 v{dr}, v{CIi}, v{zi}, v{dr}')
            a(f'v_fma_f32 v{di}, -v{CIi}, v{zr}, v{di}')
        zpow(ZR, ZI, 32, True)
        FA_LDS, FB_LDS = 0, 64*KG_ROW
        a('s_cmp_eq_u32 s22, 0')
        a(f's_cbranch_scc0 K1_KG_P1_{cc}')
        zpow(FR, FI, 1, False)
        a(f'v_mov_b32 v{XR}, v{CRr}')
        a(f'v_sub_f32 v{XI}, 0, v{CIi}')
        a(f'v_mov_b32 v{YR}, v{FR}')
        a(f'v_mov_b32 v{YI}, v{FI}')
        a(f'v_mov_b32 v{VWA}, v{T+3}')
        a(f'v_add_u32 v{VWB}, {FB_LDS}, v{T+3}')
        def step(sr_, si_, mr, mi, t0):
            a(f'v_pk_mul_f32 v[{t0}:{t0+1}], v[{sr_}:{si_}], v[{mr}:{mi}] op_sel_hi:[1,0]')
            a(f'v_pk_fma_f32 v[{sr_}:{si_}], v[{sr_}:{si_}], v[{mr}:{mi}], v[{t0}:{t0+1}] op_sel:[1,1,0] op_sel_hi:[0,1,1] neg_lo:[1,0,0]')
        for k in range(32):
            if k < 16:
                a(f'v_cvt_pk_bf16_f32 v{T+4}, v{XR}, v{XI}')
                a(f'ds_write_b32 v{VWA}, v{T+4} offset:{k*KG_ROW}')
            a(f'v_cvt_pk_bf16_f32 v{T+5}, v{YR}, v{YI}')
            a(f'ds_write_b32 v{VWB}, v{T+5} offset:{k*KG_ROW}')
            if k < 15: step(XR, XI, ZR, ZI, T+6)
            if k < 31: step(YR, YI, FR, FI, T+8)
        a(f's_branch K1_KG_J_{cc}')
        a.label(f'K1_KG_P1_{cc}')
        zpow(FR, FI, 512, True)
        cmul_conjC(XR, XI, FR, FI)
        zpow(FR, FI, 1280, True)
        cmul_conjC(YR, YI, FR, FI)
        a(f'v_add_u32 v{VWA}, {16*KG_ROW}, v{T+3}')
        a(f'v_add_u32 v{VWB}, {40*KG_ROW}, v{T+3}')
        for k in range(24):
            a(f'v_cvt_pk_bf16_f32 v{T+4}, v{XR}, v{XI}')
            a(f'ds_write_b32 v{VWA}, v{T+4} offset:{k*KG_ROW}')
            a(f'v_cvt_pk_bf16_f32 v{T+5}, v{YR}, v{YI}')
            a(f'ds_write_b32 v{VWB}, v{T+5} offset:{k*KG_ROW}')
            if k < 23:
                step(XR, XI, ZR, ZI, T+6)
                step(YR, YI, ZR, ZI, T+8)
        a.label(f'K1_KG_J_{cc}')
        if cc == 0: stamp(a, 2)
        a('s_waitcnt lgkmcnt(0)')
        a('s_barrier')
        H, I = 3, 19
        D = 32
        FAr, FBr = 48, 80
        a(f'v_lshrrev_b32 v{H}, 5, v{L}')
        a(f'v_and_b32 v{I}, 31, v{L}')
        a(f's_movk_i32 s3, {KG_ROW}')
        a(f'v_and_b32 v{T}, 1, v{W}')
        a(f'v_lshl_add_u32 v{T}, v{T}, 5, v{I}')
        a(f'v_mul_lo_u32 v{T}, v{T}, s3')
        a(f'v_lshl_add_u32 v{T}, v{H}, 4, v{T}')
        a(f's_lshl_b32 s23, s22, 8')
        a(f'v_add_u32 v{T}, s23, v{T}')
        a(f'v_mul_lo_u32 v{T+1}, v{I}, s3')
        a(f'v_lshl_add_u32 v{T+1}, v{H}, 4, v{T+1}')
        a(f'v_add_u32 v{T+1}, s23, v{T+1}')
        a(f'v_add_u32 v{T+1}, {FB_LDS}, v{T+1}')
        for s in range(8):
            a(f'ds_read_b128 {vr(FAr+4*s,4)}, v{T} offset:{32*s}')
            a(f'ds_read_b128 {vr(FBr+4*s,4)}, v{T+1} offset:{32*s}')
        for s in range(8):
            a(f's_waitcnt lgkmcnt({min(15, 2*(7-s))})')
            C = vr(D,16) if s else '0'
            a(f'v_mfma_f32_32x32x16_bf16 {vr(D,16)}, {vr(FAr+4*s,4)}, {vr(FBr+4*s,4)}, {C}')
        if cc == 0: stamp(a, 3)
        a('s_barrier')
        a(f's_mul_i32 s24, s22, 8208')
        a(f'v_lshlrev_b32 v{T}, 9, v{H}')
        a(f'v_lshl_add_u32 v{T}, v{I}, 2, v{T}')
        a(f'v_add_u32 v{T}, s24, v{T}')
        a('s_and_b32 s25, s89, 1')
        a('s_lshl_b32 s25, s25, 12')
        a(f'v_add_u32 v{T}, s25, v{T}')
        a('s_nop 7')
        for r in range(16):
            q, ii = divmod(r, 4)
            a(f'ds_write_b32 v{T}, v{D+r} offset:{4 + 1024*q + 128*ii}')
        a('s_cmp_eq_u32 s22, 0')
        a(f's_cbranch_scc0 K1_KG_NS_{cc}')
        a(f'v_mov_b32 v{T+2}, v{CRr}')
        for sh in (1, 2, 4, 8):
            a('s_nop 1')
            a(f'v_add_f32_dpp v{T+2}, v{T+2}, v{T+2} row_ror:{sh} row_mask:0xf bank_mask:0xf')
        a('s_nop 1')
        a(f'v_readlane_b32 s26, v{T+2}, 0')
        a(f'v_readlane_b32 s27, v{T+2}, 16')
        a(f'v_readlane_b32 s28, v{T+2}, 32')
        a(f'v_readlane_b32 s29, v{T+2}, 48')
        a('s_nop 1')
        a(f'v_mov_b32 v{T+2}, s26')
        a(f'v_add_f32 v{T+2}, s27, v{T+2}')
        a(f'v_add_f32 v{T+2}, s28, v{T+2}')
        a(f'v_add_f32 v{T+2}, s29, v{T+2}')
        a('s_and_b32 s25, s89, 1')
        a('s_mul_i32 s25, s25, 8208')
        a(f'v_mov_b32 v{T+3}, s25')
        a(f'ds_write_b32 v{T+3}, v{T+2}')
        a.label(f'K1_KG_NS_{cc}')
        a('s_waitcnt lgkmcnt(0)')
        a('s_barrier')
        if cc == 0: stamp(a, 4)
        G = 24
        a(f'v_lshlrev_b32 v{T}, 3, v0')
        a(f'v_sub_u32 v{T+1}, 2047, v{T}')
        for e in range(9):
            a(f'v_subrev_u32 v{G+e}, {e}, v{T+1}')
        a(f'v_cmp_gt_i32 vcc, 0, v{G+8}')
        a(f'v_max_i32 v{G+8}, 0, v{G+8}')
        for e in range(9):
            a(f'v_cvt_f32_u32 v{G+e}, v{G+e}')
        for e in range(9):
            bf16r(a, G+e, T+2)
        for e in range(9):
            a(f'v_cvt_u32_f32 v{G+e}, v{G+e}')
            a(f'v_lshlrev_b32 v{G+e}, 2, v{G+e}')
        V = 40
        for e in range(9):
            a(f'ds_read_b32 v{V+2*e}, v{G+e}')
            a(f'ds_read_b32 v{V+2*e+1}, v{G+e} offset:8208')
        a('s_waitcnt lgkmcnt(0)')
        for e in range(9):
            a(f'v_add_f32 v{V+2*e}, v{V+2*e}, v{V+2*e+1}')
        a(f'v_cndmask_b32 v{V+16}, v{V+16}, 0, vcc')
        for e in range(0, 8, 2):
            a(f'v_cvt_pk_bf16_f32 v{60+e//2}, v{V+2*e}, v{V+2*(e+1)}')
            a(f'v_cvt_pk_bf16_f32 v{64+e//2}, v{V+2*(e+1)}, v{V+2*(e+2)}')
        for i in range(8):
            a(f'v_mov_b32 v{136+8*cc+i}, v{60+i}')
        if cc == 0: stamp(a, 5)
        a('s_barrier')
    ws_ptr(a, 16, 6, WS_KT)
    a(f's_mul_i32 s3, s30, {KT_ROW}')
    a(f'v_lshlrev_b32 v{T+1}, 4, v0')
    a(f'v_add_u32 v{T+1}, s3, v{T+1}')
    for cc in range(KG_CH):
        a(f'global_store_dwordx4 v{T+1}, v[{136+8*cc}:{139+8*cc}], s[16:17]')
        a(f'v_add_u32 v{T+2}, {KT_HALF}, v{T+1}')
        a(f'global_store_dwordx4 v{T+2}, v[{140+8*cc}:{143+8*cc}], s[16:17]')
        a(f'v_add_u32 v{T+1}, {KT_ROW}, v{T+1}')
    a(f'v_cmp_gt_u32 vcc, {16*KG_CH}, v0')
    a('s_and_saveexec_b64 s[32:33], vcc')
    a('s_cbranch_execz K1_KG_E')
    for i in range(4):
        a(f'v_mov_b32 v{68+i}, 0')
    a(f'v_lshrrev_b32 v{T+1}, 3, v0')
    a(f'v_mul_u32_u24 v{T+1}, {KT_HALF}, v{T+1}')
    a(f'v_and_b32 v{T+2}, 7, v0')
    a(f'v_lshl_add_u32 v{T+1}, v{T+2}, 4, v{T+1}')
    a(f'v_add_u32 v{T+1}, s3, v{T+1}')
    a(f'v_add_u32 v{T+1}, 4096, v{T+1}')
    a(f'global_store_dwordx4 v{T+1}, v[68:71], s[16:17]')
    a.label('K1_KG_E')
    a('s_mov_b64 exec, -1')
    if INSTR:
        a('s_cmp_lt_u32 s2, 8')
        a('s_cbranch_scc0 K1_KG_ND')
        a('s_cmp_eq_u32 s89, 0')
        a('s_cbranch_scc0 K1_KG_ND')
        a('s_mov_b32 s74, s2')
        dump_stamps(a, 5, None, None)
        a.label('K1_KG_ND')
    tl_end(a, 0); a('s_endpgm')

K2_GRID = 256
K2_THREADS = 704
CS = 4256
CONV_LDS0 = PH_USED
NCP = 4
CONV_SZ = NCP*CS + 2048 + 4096
K2_CNT = PH_USED + 3*CONV_SZ
K2_LDS = K2_CNT + 16
THR = 8.0

def gen_k2(a):
    kernel_header(a, 'attn_kernel')
    tl_start(a)
    stamp(a, 0)
    a('s_movk_i32 s90, 0x7fff')
    a(f's_cmp_ge_u32 s2, {K2_GRID}')
    a('s_cbranch_scc1 K2_END')
    load_ptr(a, 6, A_WS)
    load_ptr(a, 4, A_U)
    a('v_lshrrev_b32 v1, 6, v0')
    a('s_nop 0')
    a('v_readfirstlane_b32 s3, v1')
    a('s_nop 3')
    a('s_cmp_ge_u32 s3, 8')
    a('s_cbranch_scc1 K2_CONV')
    a('s_setprio 3')
    L, H, I = 1, 2, 3
    VK1, VK2, VV = 4, 5, 6
    VST, VGO = 7, 8
    VM, VMX, T0, T1, T2, T3 = 9, 10, 11, 12, 13, 14
    VBND = 152
    Q1, Q2 = 16, 20
    P = 24
    S = [32, 48]
    O = 64
    KA = [80, 84]; KB = [88, 92]; VA = [96, 104]
    STG = 112
    a(f'v_and_b32 v{L}, 63, v0')
    a(f'v_lshrrev_b32 v{H}, 5, v{L}')
    a(f'v_and_b32 v{I}, 31, v{L}')
    a('s_waitcnt lgkmcnt(0)')
    ws_ptr(a, 8, 6, WS_KVF)
    ws_ptr(a, 10, 6, WS_Q)
    ws_ptr(a, 12, 6, WS_O)
    a(f'v_lshlrev_b32 v{VST}, 4, v0')
    a(f'v_mov_b32 v{VGO}, v{VST}')
    def stage_loads():
        for j in range(10):
            if j == 9:
                a('s_cmp_lt_u32 s3, 4')
                lab = f'K2_SL{stage_loads.n}'
                a(f's_cbranch_scc0 {lab}')
            a(f'global_load_dwordx4 {vr(STG+4*j,4)}, v{VGO}, s[8:9]')
            if j == 9:
                a.label(lab)
                stage_loads.n += 1
            a(f'v_add_u32 v{VGO}, 8192, v{VGO}')
    stage_loads.n = 0
    def stage_writes(extra):
        a(f's_waitcnt vmcnt({extra})')
        for j in range(10):
            if j == 9:
                a('s_cmp_lt_u32 s3, 4')
                lab = f'K2_SW{stage_writes.n}'
                a(f's_cbranch_scc0 {lab}')
            a(f'ds_write_b128 v{VST}, {vr(STG+4*j,4)} offset:{j*8192}' if j < 8 else
              f'ds_write_b128 v{T3}, {vr(STG+4*j,4)} offset:{(j-8)*8192}')
            if j == 9:
                a.label(lab)
                stage_writes.n += 1
    stage_writes.n = 0
    a(f'v_add_u32 v{T3}, 65536, v{VST}')
    stage_loads()
    a('s_lshl_b32 s14, s2, 3')
    a('s_add_u32 s14, s14, s3')
    a('s_mul_i32 s14, s14, 1152')
    a(f'v_mul_u32_u24 v{T0}, 36, v{I}')
    a(f'v_add_u32 v{T0}, s14, v{T0}')
    a(f'v_lshl_add_u32 v{T1}, v{H}, 4, v{T0}')
    a(f'global_load_dwordx4 {vr(Q1,4)}, v{T1}, s[10:11]')
    a(f'global_load_dword v{Q2}, v{T0}, s[10:11] offset:32')
    a(f'v_mov_b32 v{T2}, v{T0}')
    ws_ptr(a, 24, 6, WS_KMAX)
    a(f'v_lshlrev_b32 v{T0}, 2, v{L}')
    a(f'global_load_dword v{VBND}, v{T0}, s[24:25]')
    a(f'v_mov_b32 v{Q2+1}, 0')
    a(f'v_mov_b32 v{Q2+2}, 0')
    a(f'v_mov_b32 v{Q2+3}, 0')
    a('s_mov_b32 s16, -1')
    a('s_mov_b32 s17, 0')
    a('s_mov_b32 s18, 0x3ffff')
    a('s_mov_b32 s19, 0x3ffff')
    a(f'v_lshlrev_b32 v{VK1}, 4, v{L}')
    a(f'v_lshlrev_b32 v{VK2}, 3, v{I}')
    a(f'v_add_u32 v{VK2}, {KF2_OFF}, v{VK2}')
    a(f'v_mul_u32_u24 v{VV}, 18, v{H}')
    a(f'v_add_u32 v{VV}, v{I}, v{VV}')
    a(f'v_lshlrev_b32 v{VV}, 4, v{VV}')
    a(f'v_add_u32 v{VV}, {VF_OFF}, v{VV}')
    for b in range(2):
        for z in range(4): a(f'v_mov_b32 v{KB[b]+z}, 0')
    a(f'v_cmp_eq_u32 vcc, 18, v{I}')
    a(f'v_mov_b32 v{T0}, 0x3f803f80')
    a('s_nop 1')
    a(f'v_cndmask_b32 v{T0}, 0, v{T0}, vcc')
    for b in range(2):
        for i in range(8):
            a(f'v_mov_b32 v{VA[b]+i}, v{T0}')
    for i in range(16):
        a(f'v_mov_b32 v{O+i}, 0')
    a(f'v_mov_b32 v{VM}, 0')
    a(f's_mov_b32 s20, 0xff7fffff')
    stage_writes(0)
    a(f'v_mov_b32 v15, {K2_CNT}')
    a(f'v_mov_b32 v{T0}, 0')
    a(f'ds_write_b32 v15, v{T0}')
    a(f'v_cmp_eq_u32 vcc, 0, v{H}')
    a('s_nop 1')
    a(f'v_cndmask_b32 v{Q2}, 0, v{Q2}, vcc')
    for sh in (1, 2, 4, 8):
        a('s_nop 1')
        a(f'v_max_f32_dpp v{VBND}, v{VBND}, v{VBND} row_ror:{sh} row_mask:0xf bank_mask:0xf')
    a('s_nop 1')
    a(f'v_readlane_b32 s26, v{VBND}, 0')
    a(f'v_readlane_b32 s27, v{VBND}, 16')
    a(f'v_readlane_b32 s28, v{VBND}, 32')
    a(f'v_readlane_b32 s29, v{VBND}, 48')
    a('s_nop 1')
    a(f'v_mov_b32 v{VBND}, s26')
    a(f'v_max_f32 v{VBND}, s27, v{VBND}')
    a(f'v_max_f32 v{VBND}, s28, v{VBND}')
    a(f'v_max_f32 v{VBND}, s29, v{VBND}')
    a(f'v_mov_b32 v{VBND+1}, 0')
    for r in (Q1, Q1+1, Q1+2, Q1+3, Q2):
        a(f'v_lshlrev_b32 v{T0}, 16, v{r}')
        a(f'v_and_b32 v{T1}, 0xffff0000, v{r}')
        a(f'v_add_f32 v{VBND+1}, abs(v{T0}), v{VBND+1}')
        a(f'v_add_f32 v{VBND+1}, abs(v{T1}), v{VBND+1}')
    a(f'v_mov_b32 v{T0}, v{VBND+1}')
    a(f'v_mov_b32 v{T1}, v{VBND+1}')
    a('s_nop 1')
    a(f'v_permlane32_swap_b32 v{T0}, v{T1}')
    a('s_nop 1')
    a(f'v_add_f32 v{T0}, v{T0}, v{T1}')
    a(f'v_mul_f32 v{VBND}, v{VBND}, v{T0}')
    a(f'v_mul_f32 v{VBND}, 0x3f840000, v{VBND}')
    a('s_waitcnt lgkmcnt(0)')
    a('s_barrier')
    stage_loads()
    stamp(a, 1)

    def k_reads(b, off):
        a(f'ds_read_b128 {vr(KA[b],4)}, v{VK1} offset:{off*1024}')
        a('s_mov_b64 exec, s[16:17]')
        a(f'ds_read_b64 {vr(KB[b],2)}, v{VK2} offset:{off*256}')
        a('s_mov_b64 exec, -1')
    def v_reads(b, off):
        a('s_mov_b64 exec, s[18:19]')
        a(f'ds_read_b128 {vr(VA[b],4)}, v{VV} offset:{off*1152}')
        a(f'ds_read_b128 {vr(VA[b]+4,4)}, v{VV} offset:{off*1152+576}')
        a('s_mov_b64 exec, -1')
    def qk(b, sb):
        a(f'v_mfma_f32_32x32x16_bf16 {vr(S[sb],16)}, {vr(KA[b],4)}, {vr(Q1,4)}, 0')
        a(f'v_mfma_f32_32x32x16_bf16 {vr(S[sb],16)}, {vr(KB[b],4)}, {vr(Q2,4)}, {vr(S[sb],16)}')

    def tile_body(ph, b, safe):
        nb = b ^ 1
        Sb = S[b]
        a('s_waitcnt lgkmcnt(2)')
        a(f'v_mfma_f32_32x32x16_bf16 {vr(S[nb],16)}, {vr(KA[nb],4)}, {vr(Q1,4)}, 0')
        if safe:
            a(f'v_max3_f32 v{VMX}, v{Sb}, v{Sb+1}, v{Sb+2}')
            for i in range(3, 9, 2):
                a(f'v_max3_f32 v{VMX}, v{VMX}, v{Sb+i}, v{Sb+i+1}')
            a(f'v_mfma_f32_32x32x16_bf16 {vr(S[nb],16)}, {vr(KB[nb],4)}, {vr(Q2,4)}, {vr(S[nb],16)}')
            for i in range(9, 15, 2):
                a(f'v_max3_f32 v{VMX}, v{VMX}, v{Sb+i}, v{Sb+i+1}')
            a(f'v_max_f32 v{VMX}, v{VMX}, v{Sb+15}')
            a(f'v_cmp_lt_f32 vcc, s20, v{VMX}')
            a(f's_cbranch_vccnz K2_SLOW_{ph}_{b}')
            a.label(f'K2_BACK_{ph}_{b}')
            for i in range(8):
                a(f'v_exp_f32 v{Sb+i}, v{Sb+i}')
        else:
            for i in range(4):
                a(f'v_exp_f32 v{Sb+i}, v{Sb+i}')
            a(f'v_mfma_f32_32x32x16_bf16 {vr(S[nb],16)}, {vr(KB[nb],4)}, {vr(Q2,4)}, {vr(S[nb],16)}')
            for i in range(4, 8):
                a(f'v_exp_f32 v{Sb+i}, v{Sb+i}')
        k_reads(b, b + 2)
        v_reads(nb, b + 1)
        for i in range(4):
            a(f'v_cvt_pk_bf16_f32 v{P+i}, v{Sb+2*i}, v{Sb+2*i+1}')
        for i in range(8, 12):
            a(f'v_exp_f32 v{Sb+i}, v{Sb+i}')
        a('s_waitcnt lgkmcnt(4)')
        a(f'v_mfma_f32_32x32x16_bf16 {vr(O,16)}, {vr(VA[b],4)}, {vr(P,4)}, {vr(O,16)}')
        for i in range(12, 16):
            a(f'v_exp_f32 v{Sb+i}, v{Sb+i}')
        a('s_nop 0')
        for i in range(4, 8):
            a(f'v_cvt_pk_bf16_f32 v{P+i}, v{Sb+2*i}, v{Sb+2*i+1}')
        a('s_nop 1')
        a(f'v_mfma_f32_32x32x16_bf16 {vr(O,16)}, {vr(VA[b]+4,4)}, {vr(P+4,4)}, {vr(O,16)}')
    def loop_tail():
        a(f'v_add_u32 v{VK1}, 2048, v{VK1}')
        a(f'v_add_u32 v{VK2}, 512, v{VK2}')
        a(f'v_add_u32 v{VV}, 2304, v{VV}')
        a('s_add_u32 s21, s21, 1')
        a('s_cmp_lt_u32 s21, 16')
    a('s_mov_b32 s23, 0')
    for phase in range(2):
        ph = f'P{phase}'
        k_reads(0, 0)
        k_reads(1, 1)
        v_reads(0, 0)
        a('s_waitcnt lgkmcnt(4)')
        qk(0, 0)
        a('s_nop 15')
        a('s_mov_b32 s21, 0')
        a('s_cmp_eq_u32 s23, 1')
        a(f's_cbranch_scc1 K2_FLOOP_{ph}')
        a.label(f'K2_LOOP_{ph}')
        for b in range(2):
            tile_body(ph, b, True)
        a(f'v_sub_f32 v{T0}, v{VBND}, v{VM}')
        a(f'v_cmp_nle_f32 vcc, v{T0}, 0x42700000' if False else f'v_cmp_lt_f32 vcc, 0x42700000, v{T0}')
        a(f'v_cmp_u_f32 s[26:27], v{T0}, v{T0}')
        a('s_or_b64 vcc, vcc, s[26:27]')
        a('s_cmp_eq_u64 vcc, 0')
        a('s_cselect_b32 s23, 1, 0')
        loop_tail()
        a(f's_cbranch_scc0 K2_LX_{ph}')
        a('s_cmp_eq_u32 s23, 1')
        a(f's_cbranch_scc0 K2_LOOP_{ph}')
        a.label(f'K2_FLOOP_{ph}')
        for b in range(2):
            tile_body(ph, b, False)
        loop_tail()
        a(f's_cbranch_scc1 K2_FLOOP_{ph}')
        a.label(f'K2_LX_{ph}')
        stamp(a, 2+2*phase)
        if phase == 0:
            def lds_sync(k):
                a('s_waitcnt lgkmcnt(0)')
                a(f'v_mov_b32 v{T0}, 1')
                a(f'ds_add_u32 v15, v{T0}')
                a.label(f'K2_SPIN{k}')
                a(f'ds_read_b32 v{T0}, v15')
                a('s_waitcnt lgkmcnt(0)')
                a(f'v_readfirstlane_b32 s22, v{T0}')
                a(f's_cmp_ge_u32 s22, {512*k}')
                a(f's_cbranch_scc1 K2_SPINX{k}')
                a('s_sleep 1')
                a(f's_branch K2_SPIN{k}')
                a.label(f'K2_SPINX{k}')
            lds_sync(1)
            stage_writes(0)
            a(f'v_subrev_u32 v{VK1}, {16*2048}, v{VK1}')
            a(f'v_subrev_u32 v{VK2}, {16*512}, v{VK2}')
            a(f'v_subrev_u32 v{VV}, {16*2304}, v{VV}')
            lds_sync(2)
            stamp(a, 3)
    a('s_branch K2_FIN')
    for phase in range(2):
        ph = f'P{phase}'
        for b in range(2):
            nb = b ^ 1
            Sb, Sn = S[b], S[nb]
            a.label(f'K2_SLOW_{ph}_{b}')
            a(f'v_mov_b32 v{T0}, v{VMX}')
            a(f'v_mov_b32 v{T1}, v{VMX}')
            a('s_nop 1')
            a(f'v_permlane32_swap_b32 v{T0}, v{T1}')
            a('s_nop 1')
            a(f'v_max_f32 v{T0}, v{T0}, v{T1}')
            a('s_cmp_lt_i32 s20, 0')
            a(f's_cbranch_scc1 K2_SL1_{ph}_{b}')
            a(f'v_max_f32 v{T0}, 0, v{T0}')
            a.label(f'K2_SL1_{ph}_{b}')
            a(f's_mov_b32 s20, {f32bits(THR)}')
            a(f'v_add_f32 v{T1}, v{VM}, v{T0}')
            bf16r(a, T1, T0)
            a(f'v_sub_f32 v{T0}, v{T1}, v{VM}')
            a(f'v_mov_b32 v{VM}, v{T1}')
            a('s_nop 15')
            a('s_nop 7')
            for i in range(16):
                a(f'v_sub_f32 v{Sb+i}, v{Sb+i}, v{T0}')
                a(f'v_sub_f32 v{Sn+i}, v{Sn+i}, v{T0}')
            a(f'v_sub_f32 v{T0}, 0, v{T0}')
            a(f'v_exp_f32 v{T0}, v{T0}')
            a('s_nop 0')
            for i in range(16):
                a(f'v_mul_f32 v{O+i}, v{O+i}, v{T0}')
            a(f'v_xor_b32 v{T1}, 0x80000000, v{T1}')
            a(f'v_lshrrev_b32 v{T1}, 16, v{T1}')
            a('s_mov_b64 exec, s[16:17]')
            a(f'v_mov_b32 v{Q2+1}, v{T1}')
            a('s_mov_b64 exec, -1')
            a('s_nop 1')
            a(f's_branch K2_BACK_{ph}_{b}')
    a.label('K2_FIN')
    a('s_nop 15')
    a('s_nop 3')
    a(f'v_mov_b32 v{T0}, v{O+10}')
    a(f'v_mov_b32 v{T1}, v{O+10}')
    a('s_nop 1')
    a(f'v_permlane32_swap_b32 v{T0}, v{T1}')
    a('s_nop 1')
    a(f'v_rcp_f32 v{T0}, v{T0}')
    a('s_nop 0')
    for i in range(10):
        a(f'v_mul_f32 v{O+i}, v{O+i}, v{T0}')
    for i in range(0, 10, 2):
        a(f'v_cvt_pk_bf16_f32 v{P+i//2}, v{O+i}, v{O+i+1}')
    a(f'v_lshl_add_u32 v{T1}, v{H}, 3, v{T2}')
    a(f'global_store_dwordx2 v{T1}, {vr(P,2)}, s[12:13]')
    a(f'global_store_dwordx2 v{T1}, {vr(P+2,2)}, s[12:13] offset:16')
    a('s_mov_b64 exec, s[16:17]')
    a(f'global_store_dword v{T1}, v{P+4}, s[12:13] offset:32')
    if INSTR:
        a('s_memtime s[70:71]')
        a('s_cmp_lt_u32 s2, 1')
        a('s_cbranch_scc0 K2_END')
        a('s_mov_b32 s74, s3')
        dump_stamps(a, 5, None, None)
    tl_end(a, 1); a('s_endpgm')

    a.label('K2_CONV')
    a('s_sub_u32 s3, s3, 8')
    a('s_lshl_b32 s14, s3, 8')
    a('s_add_u32 s14, s14, s2')
    a('s_cmp_ge_u32 s14, 576')
    a('s_cbranch_scc1 K2_END2')
    L, H, I = 1, 2, 3
    VA_, VB_ = 4, 5
    a(f'v_and_b32 v{L}, 63, v0')
    a(f'v_lshrrev_b32 v{H}, 5, v{L}')
    a(f'v_and_b32 v{I}, 31, v{L}')
    a('s_waitcnt lgkmcnt(0)')
    ws_ptr(a, 8, 6, WS_KT)
    ws_ptr(a, 10, 6, WS_UT)
    ws_ptr(a, 12, 6, WS_YT)
    a(f's_mul_i32 s15, s3, {CONV_SZ}')
    a(f's_add_u32 s15, s15, {CONV_LDS0}')
    a(f'v_lshlrev_b32 v6, 4, v{L}')
    a('s_mov_b32 s24, 0x3ff')
    a('s_mov_b32 s25, 0')
    a(f's_mul_i32 s16, s14, {KT_ROW}')
    a(f'v_add_u32 v9, s15, v6')
    for c in range(NCP):
        b, off = c & 1, 4*(c >> 1)
        a(f's_add_u32 s17, s16, {b*KT_HALF + off}')
        a(f'v_add_u32 v7, s17, v6')
        for j in range(4):
            a(f'global_load_dwordx4 {vr(16 + c*20 + 4*j,4)}, v7, s[8:9] offset:{j*1024}')
        a(f'v_add_u32 v7, 4096, v7')
        a(f'global_load_dwordx4 {vr(16 + c*20 + 16,4)}, v7, s[8:9]')
    a('s_lshl_b32 s17, s14, 12')
    a('v_add_u32 v7, s17, v6')
    for j in range(4):
        a(f'global_load_dwordx4 {vr(96+4*j,4)}, v7, s[10:11] offset:{j*1024}')
    a('s_barrier')
    for i in range(4):
        a(f'v_mov_b32 v{112+i}, 0')
    a(f'ds_write_b128 v9, v[112:115] offset:{NCP*CS}')
    a(f'ds_write_b128 v9, v[112:115] offset:{NCP*CS+1024}')
    a('s_waitcnt vmcnt(0)')
    for c in range(NCP):
        for j in range(4):
            a(f'ds_write_b128 v9, {vr(16 + c*20 + 4*j,4)} offset:{c*CS + j*1024}')
    a('s_mov_b64 exec, s[24:25]')
    for c in range(NCP):
        a(f'ds_write_b128 v9, {vr(16 + c*20 + 16,4)} offset:{c*CS + 4096}')
    a('s_mov_b64 exec, -1')
    for j in range(4):
        a(f'ds_write_b128 v9, {vr(96+4*j,4)} offset:{NCP*CS + 2048 + j*1024}')
    a(f'v_lshlrev_b32 v10, 3, v{H}')
    a(f'v_sub_u32 v10, v10, v{I}')
    a(f'v_add_u32 v10, 2047, v10')
    a(f'v_and_b32 v11, 3, v10')
    a(f'v_sub_u32 v10, v10, v11')
    a(f'v_lshlrev_b32 v10, 1, v10')
    a(f's_movk_i32 s17, {CS}')
    a(f'v_mul_lo_u32 v11, v11, s17')
    a(f'v_add3_u32 v{VA_}, v10, v11, s15')
    a(f'v_lshlrev_b32 v{VB_}, 6, v{I}')
    a(f'v_lshl_add_u32 v{VB_}, v{H}, 4, v{VB_}')
    a(f'v_add_u32 v{VB_}, s15, v{VB_}')
    a(f'v_add_u32 v{VB_}, {NCP*CS + 2048}, v{VB_}')
    Y = [64, 80]
    FA = [16, 24]
    FBq = [32, 48]
    for i in range(32):
        a(f'v_mov_b32 v{64+i}, 0')
    a('s_waitcnt lgkmcnt(0)')
    def reads(buf, both):
        a(f'ds_read2_b64 {vr(FA[buf],4)}, v{VA_} offset0:0 offset1:1')
        a(f'ds_read2_b64 {vr(FA[buf]+4,4)}, v{VA_} offset0:4 offset1:5')
        if both:
            a(f'ds_read_b128 {vr(FBq[buf],4)}, v{VB_}')
            a(f'ds_read_b128 {vr(FBq[buf]+4,4)}, v{VB_} offset:32')
        a(f'ds_read_b128 {vr(FBq[buf]+8,4)}, v{VB_} offset:2048')
        a(f'ds_read_b128 {vr(FBq[buf]+12,4)}, v{VB_} offset:2080')
        a(f'v_subrev_u32 v{VA_}, 64, v{VA_}')
        a(f'v_subrev_u32 v{VB_}, 64, v{VB_}')
    def mfmas(buf, both):
        if both:
            a(f'v_mfma_f32_32x32x16_bf16 {vr(Y[0],16)}, {vr(FA[buf],4)}, {vr(FBq[buf],4)}, {vr(Y[0],16)}')
            a(f'v_mfma_f32_32x32x16_bf16 {vr(Y[0],16)}, {vr(FA[buf]+4,4)}, {vr(FBq[buf]+4,4)}, {vr(Y[0],16)}')
        a(f'v_mfma_f32_32x32x16_bf16 {vr(Y[1],16)}, {vr(FA[buf],4)}, {vr(FBq[buf]+8,4)}, {vr(Y[1],16)}')
        a(f'v_mfma_f32_32x32x16_bf16 {vr(Y[1],16)}, {vr(FA[buf]+4,4)}, {vr(FBq[buf]+12,4)}, {vr(Y[1],16)}')
    reads(0, True)
    a('s_mov_b32 s17, 0')
    a.label('K2_CV1')
    reads(1, True)
    a('s_waitcnt lgkmcnt(6)')
    mfmas(0, True)
    a('s_add_u32 s17, s17, 1')
    a('s_cmp_lt_u32 s17, 16')
    a('s_cbranch_scc0 K2_CV1X')
    reads(0, True)
    a('s_waitcnt lgkmcnt(6)')
    mfmas(1, True)
    a('s_branch K2_CV1')
    a.label('K2_CV1X')
    reads(0, False)
    a('s_waitcnt lgkmcnt(4)')
    mfmas(1, True)
    a('s_mov_b32 s17, 0')
    a.label('K2_CV2')
    reads(1, False)
    a('s_waitcnt lgkmcnt(4)')
    mfmas(0, False)
    a('s_add_u32 s17, s17, 1')
    a('s_cmp_lt_u32 s17, 16')
    a('s_cbranch_scc0 K2_CV2X')
    reads(0, False)
    a('s_waitcnt lgkmcnt(4)')
    mfmas(1, False)
    a('s_branch K2_CV2')
    a.label('K2_CV2X')
    a('s_waitcnt lgkmcnt(0)')
    mfmas(1, False)
    a('s_nop 15')
    a('s_nop 3')
    a(f'v_lshlrev_b32 v10, 6, v{I}')
    a(f'v_lshl_add_u32 v10, v{H}, 3, v10')
    a('s_lshl_b32 s16, s14, 12')
    a('v_add_u32 v10, s16, v10')
    for ct in range(2):
        for q in range(4):
            y = Y[ct] + 4*q
            a(f'v_cvt_pk_bf16_f32 v{y}, v{y}, v{y+1}')
            a(f'v_cvt_pk_bf16_f32 v{y+1}, v{y+2}, v{y+3}')
            a(f'global_store_dwordx2 v10, {vr(y,2)}, s[12:13] offset:{ct*2048 + q*16}')
    a.label('K2_END2')
    a('s_endpgm')
    a.label('K2_END')
    tl_end(a, 1); a('s_endpgm')

K3_GRID = 192
K3_LDS = GEMM_LDS
def gen_k3(a):
    kernel_header(a, 'outp_kernel')
    tl_start(a)
    stamp(a, 0)
    a('s_movk_i32 s90, 0x7fff')
    a(f's_cmp_ge_u32 s2, {K3_GRID}')
    a('s_cbranch_scc1 K3_END')
    load_ptr(a, 6, A_WS); load_ptr(a, 8, A_WO); load_ptr(a, 10, A_DSKIP); load_ptr(a, 18, A_OUT)
    gemm_tile_map(a, 's2')
    gemm_lane_setup(a)
    gemm_a_setup(a, 12)
    a(f's_mov_b32 s86, {TRN_OFF}')
    a('s_waitcnt lgkmcnt(0)')
    stamp(a, 1)
    ws_ptr(a, 16, 6, WS_O)
    ws_ptr(a, 20, 6, WS_G)
    ws_ptr(a, 22, 6, WS_YT)
    ws_ptr(a, 24, 6, WS_UT)
    GV, YV, UV, DS = 208, 216, 228, 240
    R0 = 243
    gemm_stage_b_dma(a, 8, 13, 'K3')
    for ks in range(6):
        a_load(a, 16, ks)
    a(f'v_lshlrev_b32 v{R0}, 5, {vr(G_W)}')
    a(f'v_lshl_add_u32 v{R0}, {vr(G_G)}, 2, v{R0}')
    a(f'v_add_u32 v{R0}, s12, v{R0}')
    a(f'v_add_u32 v13, s13, {vr(G_I)}')
    a(f'v_lshlrev_b32 v14, 12, v13')
    a(f'v_lshl_add_u32 v14, v{R0}, 1, v14')
    a(f'v_add_u32 v15, 65536, v14')
    a(f'v_add_u32 v244, 65536, v15')
    a(f'v_lshlrev_b32 v13, 1, v13')
    a(f'v_lshlrev_b32 v245, 2, v{R0}')
    ex = []
    for mt in range(2):
        ex.append(lambda mt=mt: a(f'global_load_dwordx4 {vr(GV+4*mt,4)}, v245, s[20:21] offset:{mt*64}'))
    for nt in range(3):
        ex.append(lambda nt=nt: a(f'global_load_ushort v{DS+nt}, v13, s[10:11] offset:{32*nt}'))
    for nt in range(3):
        va = (14, 15, 244)[nt]
        for mt in range(2):
            ex.append(lambda nt=nt, mt=mt, va=va: a(f'global_load_dwordx2 {vr(YV+4*nt+2*mt,2)}, v{va}, s[22:23] offset:{mt*32}'))
            ex.append(lambda nt=nt, mt=mt, va=va: a(f'global_load_dwordx2 {vr(UV+4*nt+2*mt,2)}, v{va}, s[24:25] offset:{mt*32}'))
    stamp(a, 2)
    gemm_tr_setup(a)
    a('s_waitcnt vmcnt(12)')
    a('s_barrier')
    stamp(a, 3)
    gemm_main(a, 16, extra=ex)
    stamp(a, 4)
    a('s_waitcnt vmcnt(0)')
    for nt in range(3):
        a(f'v_lshlrev_b32 v{DS+nt}, 16, v{DS+nt}')
    TT = G_ABUF
    for i in range(8):
        a(f'v_sub_f32 v{TT+8+i}, 1.0, v{GV+i}')
    for mt in range(2):
        for nt in range(3):
            for ii in range(4):
                b = G_ACC + 12*mt + 4*nt + ii
                u = TT + 2
                ureg = UV + 4*nt + 2*mt + (ii >> 1)
                yreg = YV + 4*nt + 2*mt + (ii >> 1)
                if ii & 1:
                    a(f'v_and_b32 v{u}, 0xffff0000, v{ureg}')
                    a(f'v_and_b32 v{TT+1}, 0xffff0000, v{yreg}')
                else:
                    a(f'v_lshlrev_b32 v{u}, 16, v{ureg}')
                    a(f'v_lshlrev_b32 v{TT+1}, 16, v{yreg}')
                a(f'v_fma_f32 v{u}, v{u}, v{DS+nt}, v{TT+1}')
                a(f'v_mul_f32 v{b}, v{TT+8+4*mt+ii}, v{b}')
                a(f'v_fma_f32 v{b}, v{GV+4*mt+ii}, v{u}, v{b}')
    gemm_store_tile(a, 18)
    if INSTR:
        a('s_waitcnt vmcnt(0)')
        stamp(a, 5)
        a('s_cmp_lt_u32 s2, 8')
        a('s_cbranch_scc0 K3_END')
        a('s_cmp_eq_u32 s89, 0')
        a('s_cbranch_scc0 K3_END')
        a('s_mov_b32 s74, s2')
        dump_stamps(a, 5, None, None)
    tl_end(a, 2)
    a.label('K3_END')
    a('s_endpgm')

def main(outpath):
    hdr = open('gated_mix__ssm_conv_s4d__grouped_kv_mqa__prompt.s.ref').read().split('\n')
    head = [l for l in hdr if l.startswith(';') and '@launch' not in l and 'Override launch' not in l and 'grid=ceil' not in l]
    out = '\n'.join(head) + '\n'
    out += f'; @launch kernel=prep_kernel grid=({K1_GRID},1,1) block=(256,1,1) lds={K1_LDS}\n'
    out += f'; @launch kernel=attn_kernel grid=({K2_GRID},1,1) block=({K2_THREADS},1,1) lds={K2_LDS}\n'
    out += f'; @launch kernel=outp_kernel grid=({K3_GRID},1,1) block=(256,1,1) lds={K3_LDS}\n'
    out += '.amdgcn_target "amdgcn-amd-amdhsa--gfx950"\n'
    a = Asm()
    gen_k1(a); gen_k2(a); gen_k3(a)
    out += a.text()
    out += kernel_desc('prep_kernel', 224)
    out += kernel_desc('attn_kernel', 160)
    out += kernel_desc('outp_kernel', 248)
    open(outpath, 'w').write(out)

if __name__ == '__main__':
    if len(sys.argv) > 2 and sys.argv[2] == 'instr': INSTR = True
    if len(sys.argv) > 2 and sys.argv[2] == 'tl': TL = True
    main(sys.argv[1] if len(sys.argv) > 1 else 'gated_mix__ssm_conv_s4d__grouped_kv_mqa__prompt.s')
```

```python
import math, sys, struct

WS_Q   = 0
WS_O   = 2359296
WS_KVF = 4718592
PH_BYTES = 81920
PH_USED = 77824
KF1_OFF = 0
KF2_OFF = 32768
VF_OFF  = 40960
WS_G   = 4882432
WS_KMAX = 14483456
WS_KT  = 4890624
KT_HALF = 4224
KT_ROW = 8448
WS_UT  = 12124160
WS_YT  = 9764864

LOG2E = 1.4426950408889634
QSCALE = LOG2E / math.sqrt(18.0)
INSTR = False

def f32bits(x):
    return struct.unpack('<I', struct.pack('<f', x))[0]

class Asm:
    def __init__(self):
        self.lines = []
    def __call__(self, s):
        for ln in s.strip('\n').split('\n'):
            self.lines.append('    ' + ln.strip())
    def label(self, name):
        self.lines.append(name + ':')
    def raw(self, s):
        self.lines.append(s)
    def text(self):
        return '\n'.join(self.lines) + '\n'

def vr(a, n=1):
    return f'v{a}' if n == 1 else f'v[{a}:{a+n-1}]'
def sr(a, n=1):
    return f's{a}' if n == 1 else f's[{a}:{a+n-1}]'

TL = False
def tl_start(a):
    if TL:
        a('s_memrealtime s[80:81]')
def tl_end(a, kidx):
    if TL:
        a('s_memrealtime s[82:83]')
        load_ptr(a, 84, A_WS)
        a('s_waitcnt lgkmcnt(0) vmcnt(0)')
        a('s_mov_b64 exec, -1')
        a('v_cmp_eq_u32 vcc, 0, v0')
        a('s_and_saveexec_b64 s[86:87], vcc')
        a(f's_lshl_b32 s78, s2, 4')
        a(f's_add_u32 s78, s78, {0x3000000 + kidx*0x10000}')
        a('v_mov_b32 v1, s78')
        a('v_mov_b32 v2, s80')
        a('v_mov_b32 v3, s82')
        a('global_store_dwordx2 v1, v[2:3], s[84:85]')

def kernel_header(a, name):
    a.raw('.text')
    a.raw(f'.globl {name}')
    a.raw('.p2align 8')
    a.raw(f'.type {name},@function')
    a.label(name)

def kernel_desc(name, vgpr, sgpr=96):
    acc = (vgpr + 3) // 4 * 4
    return f'''.section .rodata,"a"
.p2align 6
.amdhsa_kernel {name}
  .amdhsa_next_free_vgpr {vgpr}
  .amdhsa_next_free_sgpr {sgpr}
  .amdhsa_accum_offset {acc}
  .amdhsa_group_segment_fixed_size 0
  .amdhsa_kernarg_size 128
  .amdhsa_user_sgpr_count 2
  .amdhsa_user_sgpr_kernarg_segment_ptr 1
  .amdhsa_system_sgpr_workgroup_id_x 1
.end_amdhsa_kernel
'''

A_U, A_LOGA, A_AIM, A_CRE, A_CIM, A_LOGDT, A_DSKIP, A_BX, A_WQ, A_WK, A_WV, A_WO, A_GW, A_OUT, A_DBG, A_WS = range(16)

def load_ptr(a, sdst, slot):
    a(f's_load_dwordx2 {sr(sdst,2)}, s[0:1], {slot*8}')
def ws_ptr(a, sdst, sws, off):
    a(f's_add_u32 {sr(sdst)}, {sr(sws)}, {off}')
    a(f's_addc_u32 {sr(sdst+1)}, {sr(sws+1)}, 0')
def bf16r(a, v, tmp):
    a(f'v_bfe_u32 {vr(tmp)}, {vr(v)}, 16, 1')
    a(f'v_add3_u32 {vr(v)}, {vr(v)}, {vr(tmp)}, s90')
    a(f'v_and_b32 {vr(v)}, 0xffff0000, {vr(v)}')
def div_const(a, sq, srem, ssrc, c, stmp):
    magic = (2**32 + c - 1)//c
    a(f's_mov_b32 {sr(stmp)}, {magic}')
    a(f's_mul_hi_u32 {sr(sq)}, {sr(ssrc)}, {sr(stmp)}')
    a(f's_mul_i32 {sr(stmp)}, {sr(sq)}, {c}')
    a(f's_sub_u32 {sr(srem)}, {sr(ssrc)}, {sr(stmp)}')
def stamp(a, k):
    if INSTR:
        a(f's_memtime s[{60+2*k}:{61+2*k}]')
def dump_stamps(a, n, cond_label, slot_sgpr_expr):
    load_ptr(a, 72, A_DBG)
    a('s_waitcnt lgkmcnt(0)')
    a('s_lshl_b32 s74, s74, 5')
    a('v_mov_b32 v1, s74')
    for k in range(1, n+1):
        a(f's_sub_u32 s75, s{60+2*k}, s60')
        a('v_mov_b32 v2, s75')
        a(f'global_store_dword v1, v2, s[72:73] offset:{4*k}')

G_L, G_G, G_I, G_W, G_AOFF, G_BOFF, G_LDS, G_TR, G_T0, G_T1, G_T2, G_T3 = range(1, 13)
NT = 3
G_BF = 16
G_ACC = 40
G_ABUF = 64
G_FREE = 208
BT_BYTES = 576*96
TRN_OFF = BT_BYTES
GEMM_LDS = BT_BYTES + 4*3072

def gemm_lane_setup(a):
    a(f'v_and_b32 {vr(G_L)}, 63, v0')
    a(f'v_lshrrev_b32 {vr(G_W)}, 6, v0')
    a(f'v_lshrrev_b32 {vr(G_G)}, 4, {vr(G_L)}')
    a(f'v_and_b32 {vr(G_I)}, 15, {vr(G_L)}')
    a('s_movk_i32 s91, 1152')
    a(f'v_readfirstlane_b32 s89, {vr(G_W)}')

def gemm_tile_map(a, src):
    a(f's_and_b32 s15, {src}, 7')
    a(f's_lshr_b32 s3, {src}, 3')
    div_const(a, 12, 13, 3, 12, 14)
    a('s_lshl_b32 s12, s12, 3')
    a('s_add_u32 s12, s12, s15')
    a('s_lshl_b32 s12, s12, 7')
    a('s_mul_i32 s13, s13, 48')

def gemm_a_setup(a, s_m0):
    a(f'v_lshl_add_u32 {vr(G_AOFF)}, {vr(G_W)}, 5, {vr(G_I)}')
    a(f'v_add_u32 {vr(G_AOFF)}, {sr(s_m0)}, {vr(G_AOFF)}')
    a(f'v_mul_lo_u32 {vr(G_AOFF)}, {vr(G_AOFF)}, s91')
    a(f'v_lshl_add_u32 {vr(G_AOFF)}, {vr(G_G)}, 4, {vr(G_AOFF)}')
    a(f'v_add_u32 {vr(G_LDS)}, {16*1152}, {vr(G_AOFF)}')

def a_load(a, sA, ks):
    base = G_ABUF + ks*8
    a(f'global_load_dwordx4 {vr(base, 4)}, {vr(G_AOFF)}, {sr(sA,2)} offset:{ks*64}')
    a(f'global_load_dwordx4 {vr(base+4, 4)}, {vr(G_LDS)}, {sr(sA,2)} offset:{ks*64}')

def gemm_stage_b_dma(a, sB, s_n0, tag):
    a(f's_lshl_b32 s92, {sr(s_n0)}, 1')
    a('s_lshl_b32 s88, s89, 10')
    a(f's_mov_b32 s87, {(2**32 + 5)//6}')
    for j in range(14):
        if j == 13:
            a('s_cmp_lt_u32 s89, 2')
            a(f's_cbranch_scc0 {tag}_B13')
        a(f'v_add_u32 {vr(G_T0)}, {256*j}, v0')
        a(f'v_mul_hi_u32 {vr(G_T1)}, {vr(G_T0)}, s87')
        a(f'v_mul_u32_u24 {vr(G_T2)}, 6, {vr(G_T1)}')
        a(f'v_sub_u32 {vr(G_T2)}, {vr(G_T0)}, {vr(G_T2)}')
        a(f'v_mul_lo_u32 {vr(G_BOFF)}, {vr(G_T1)}, s91')
        a(f'v_lshl_add_u32 {vr(G_BOFF)}, {vr(G_T2)}, 4, {vr(G_BOFF)}')
        a(f'v_add_u32 {vr(G_BOFF)}, s92, {vr(G_BOFF)}')
        a(f's_add_u32 m0, s88, {j*4096}')
        a('s_nop 0')
        a(f'global_load_lds_dwordx4 {vr(G_BOFF)}, {sr(sB,2)}')
    a.label(f'{tag}_B13')

def gemm_tr_setup(a):
    a(f'v_lshrrev_b32 {vr(G_T1)}, 2, {vr(G_I)}')
    a(f'v_lshl_add_u32 {vr(G_T1)}, {vr(G_G)}, 3, {vr(G_T1)}')
    a(f'v_mul_u32_u24 {vr(G_TR)}, 96, {vr(G_T1)}')
    a(f'v_and_b32 {vr(G_T0)}, 3, {vr(G_I)}')
    a(f'v_lshl_add_u32 {vr(G_TR)}, {vr(G_T0)}, 3, {vr(G_TR)}')

def gemm_main(a, sA, swap=False, pre=6, extra=None):
    extra = list(extra or [])
    def tr_reads(ks):
        off = ks*3072
        dst = G_BF + (ks % 2)*12
        for nt in range(NT):
            a(f'ds_read_b64_tr_b16 {vr(dst+4*nt,2)}, {vr(G_TR)} offset:{off + 32*nt}')
            a(f'ds_read_b64_tr_b16 {vr(dst+4*nt+2,2)}, {vr(G_TR)} offset:{off + 32*nt + 384}')
    issued = 2*pre
    pos = {ks: 2*ks + 2 for ks in range(pre)}
    tr_reads(0)
    for ks in range(18):
        if ks + 1 < 18:
            tr_reads(ks + 1)
        if ks + pre < 18:
            a_load(a, sA, ks + pre); issued += 2; pos[ks + pre] = issued
        elif extra:
            for _ in range(3):
                if extra:
                    extra.pop(0)(); issued += 1
        vm = min(63, issued - pos[ks])
        a(f's_waitcnt vmcnt({vm}) lgkmcnt({6 if ks + 1 < 18 else 0})')
        for mt in range(2):
            for nt in range(NT):
                X, W = vr(G_ABUF + ks*8 + 4*mt, 4), vr(G_BF + (ks % 2)*12 + 4*nt, 4)
                D = vr(G_ACC + 12*mt + 4*nt, 4)
                C = D if ks else '0'
                if swap:
                    a(f'v_mfma_f32_16x16x32_bf16 {D}, {W}, {X}, {C}')
                else:
                    a(f'v_mfma_f32_16x16x32_bf16 {D}, {X}, {W}, {C}')
    while extra:
        extra.pop(0)()
    a('s_nop 15')

def gemm_store_tile(a, sOut):
    a(f'v_mul_u32_u24 {vr(G_T0)}, {3072}, {vr(G_W)}')
    a(f'v_mul_u32_u24 {vr(G_T1)}, 384, {vr(G_G)}')
    a(f'v_add3_u32 {vr(G_T0)}, {vr(G_T0)}, {vr(G_T1)}, s86')
    a(f'v_lshl_add_u32 {vr(G_T1)}, {vr(G_I)}, 1, {vr(G_T0)}')
    for mt in range(2):
        for nt in range(NT):
            r0 = G_ACC + 12*mt + 4*nt
            a(f'v_cvt_pk_bf16_f32 v{r0}, v{r0}, v{r0+1}')
            a(f'v_cvt_pk_bf16_f32 v{r0+2}, v{r0+2}, v{r0+3}')
            for r in range(4):
                off = (16*mt + r)*96 + 32*nt
                src = r0 + (r & 2)
                op = 'ds_write_b16_d16_hi' if r & 1 else 'ds_write_b16'
                a(f'{op} {vr(G_T1)}, v{src} offset:{off}')
    a(f's_mov_b32 s87, {(2**32 + 5)//6}')
    a(f'v_mul_u32_u24 {vr(G_T0)}, {3072}, {vr(G_W)}')
    a(f'v_add_u32 {vr(G_T0)}, s86, {vr(G_T0)}')
    a(f'v_lshl_add_u32 {vr(G_T0)}, {vr(G_L)}, 4, {vr(G_T0)}')
    a('s_waitcnt lgkmcnt(0)')
    for j in range(3):
        a(f'ds_read_b128 {vr(G_ABUF+4*j,4)}, {vr(G_T0)} offset:{j*1024}')
    a(f'v_lshlrev_b32 {vr(G_T3)}, 5, {vr(G_W)}')
    a(f'v_add_u32 {vr(G_T3)}, s12, {vr(G_T3)}')
    a(f's_lshl_b32 s92, s13, 1')
    for j in range(3):
        a(f'v_add_u32 {vr(G_T0)}, {64*j}, {vr(G_L)}')
        a(f'v_mul_hi_u32 {vr(G_T1)}, {vr(G_T0)}, s87')
        a(f'v_mul_u32_u24 {vr(G_T2)}, 6, {vr(G_T1)}')
        a(f'v_sub_u32 {vr(G_T2)}, {vr(G_T0)}, {vr(G_T2)}')
        a(f'v_add_u32 {vr(G_T1)}, {vr(G_T3)}, {vr(G_T1)}')
        a(f'v_mul_lo_u32 {vr(G_T1)}, {vr(G_T1)}, s91')
        a(f'v_lshl_add_u32 {vr(G_T1)}, {vr(G_T2)}, 4, {vr(G_T1)}')
        a(f'v_add_u32 {vr(G_T1)}, s92, {vr(G_T1)}')
        a(f's_waitcnt lgkmcnt({2-j})')
        a(f'global_store_dwordx4 {vr(G_T1)}, {vr(G_ABUF+4*j,4)}, {sr(sOut,2)}')

N_KGEN, N_QP, N_KV, N_UT = 288, 192, 32, 0
KG_CH = 2
K1_GRID = N_KGEN + N_QP + N_KV + N_UT
KG_ROW = 528
K1_LDS = GEMM_LDS

def gen_k1(a):
    kernel_header(a, 'prep_kernel')
    tl_start(a)
    stamp(a, 0)
    a('s_movk_i32 s90, 0x7fff')
    load_ptr(a, 4, A_U)
    load_ptr(a, 6, A_WS)
    a(f's_cmp_lt_u32 s2, {N_KGEN}')
    a('s_cbranch_scc1 K1_KGEN')
    a(f's_cmp_lt_u32 s2, {N_KGEN+N_QP}')
    a('s_cbranch_scc1 K1_QP')
    a(f's_cmp_lt_u32 s2, {N_KGEN+N_QP+N_KV}')
    a('s_cbranch_scc1 K1_KV')
    a('s_endpgm')

    a.label('K1_QP')
    load_ptr(a, 8, A_WQ)
    a(f's_sub_u32 s24, s2, {N_KGEN}')
    gemm_tile_map(a, 's24')
    gemm_lane_setup(a)
    gemm_a_setup(a, 12)
    a(f's_mov_b32 s86, {TRN_OFF}')
    a('s_waitcnt lgkmcnt(0)')
    gemm_stage_b_dma(a, 8, 13, 'K1QP')
    for ks in range(6):
        a_load(a, 4, ks)
    gemm_tr_setup(a)
    UTR = G_FREE
    a(f's_mov_b32 s87, {(2**32 + 5)//6}')
    a(f's_lshl_b32 s92, s13, 1')
    ex = []
    def ut_load(j):
        a(f'v_add_u32 v13, {64*j}, {vr(G_L)}')
        a(f'v_mul_hi_u32 v14, v13, s87')
        a(f'v_mul_u32_u24 v15, 6, v14')
        a(f'v_sub_u32 v15, v13, v15')
        a(f'v_lshl_add_u32 v13, {vr(G_W)}, 5, v14')
        a(f'v_add_u32 v13, s12, v13')
        a(f'v_mul_lo_u32 v13, v13, s91')
        a(f'v_lshl_add_u32 v13, v15, 4, v13')
        a(f'v_add_u32 v13, s92, v13')
        a(f'global_load_dwordx4 {vr(UTR+4*j,4)}, v13, s[4:5]')
    for j in range(3):
        ex.append(lambda j=j: ut_load(j))
    a('s_waitcnt vmcnt(12)')
    a('s_barrier')
    gemm_main(a, 4, extra=ex)
    a(f'v_mul_u32_u24 {vr(G_T0)}, 3072, {vr(G_W)}')
    a(f'v_add_u32 {vr(G_T0)}, s86, {vr(G_T0)}')
    a(f'v_lshl_add_u32 {vr(G_T1)}, {vr(G_L)}, 4, {vr(G_T0)}')
    a('s_waitcnt vmcnt(0)')
    for j in range(3):
        a(f'ds_write_b128 {vr(G_T1)}, {vr(UTR+4*j,4)} offset:{j*1024}')
    a(f'v_lshrrev_b32 {vr(G_T2)}, 2, {vr(G_I)}')
    a(f'v_mul_u32_u24 {vr(G_T2)}, 96, {vr(G_T2)}')
    a(f'v_lshl_add_u32 {vr(G_T2)}, {vr(G_G)}, 5, {vr(G_T2)}')
    a(f'v_and_b32 {vr(G_T3)}, 3, {vr(G_I)}')
    a(f'v_lshl_add_u32 {vr(G_T2)}, {vr(G_T3)}, 3, {vr(G_T2)}')
    a(f'v_add_u32 {vr(G_T2)}, {vr(G_T0)}, {vr(G_T2)}')
    a('s_waitcnt lgkmcnt(0)')
    UR = G_ABUF
    for e in range(8):
        a(f'ds_read_b64_tr_b16 {vr(UR+2*e,2)}, {vr(G_T2)} offset:{e*384}')
    ws_ptr(a, 16, 6, WS_UT)
    a(f'v_lshl_add_u32 {vr(G_T3)}, {vr(G_G)}, 4, {vr(G_I)}')
    a(f'v_add_u32 {vr(G_T3)}, s13, {vr(G_T3)}')
    a(f'v_lshlrev_b32 {vr(G_T3)}, 12, {vr(G_T3)}')
    a(f'v_lshlrev_b32 {vr(G_T1)}, 5, {vr(G_W)}')
    a(f'v_add_u32 {vr(G_T1)}, s12, {vr(G_T1)}')
    a(f'v_lshl_add_u32 {vr(G_T3)}, {vr(G_T1)}, 1, {vr(G_T3)}')
    a(f'v_cmp_gt_u32 vcc, 3, {vr(G_G)}')
    a('s_waitcnt lgkmcnt(0)')
    a('s_and_saveexec_b64 s[20:21], vcc')
    for q in range(4):
        a(f'global_store_dwordx4 {vr(G_T3)}, {vr(UR+4*q,4)}, s[16:17] offset:{16*q}')
    a('s_mov_b64 exec, s[20:21]')
    ws_ptr(a, 16, 6, WS_Q)
    a(f's_mov_b32 s93, {f32bits(QSCALE)}')
    for r in range(24):
        a(f'v_mul_f32 {vr(G_ACC+r)}, s93, {vr(G_ACC+r)}')
    gemm_store_tile(a, 16)
    tl_end(a, 0); a('s_endpgm')

    a.label('K1_KV')
    load_ptr(a, 8, A_WK)
    load_ptr(a, 10, A_WV)
    load_ptr(a, 18, A_GW)
    a(f's_sub_u32 s3, s2, {N_KGEN+N_QP}')
    a('s_and_b32 s15, s3, 1')
    a('s_lshr_b32 s12, s3, 1')
    a('s_lshl_b32 s12, s12, 7')
    gemm_lane_setup(a)
    gemm_a_setup(a, 12)
    a('s_waitcnt lgkmcnt(0)')
    a('s_cmp_eq_u32 s15, 0')
    a('s_cselect_b32 s8, s8, s10')
    a('s_cselect_b32 s9, s9, s11')
    a(f'v_mov_b32 {vr(G_T3)}, s15')
    a(f'v_cmp_eq_u32 s[24:25], 0, {vr(G_T3)}')
    def w_loads(j, WR):
        a(f'v_add_u32 {vr(G_T0)}, {256*j}, v0')
        a(f'v_mul_u32_u24 {vr(G_T1)}, 36, {vr(G_T0)}')
        a(f'global_load_dwordx4 {vr(WR,4)}, {vr(G_T1)}, s[8:9]')
        a(f'global_load_dwordx4 {vr(WR+4,4)}, {vr(G_T1)}, s[8:9] offset:16')
        a(f'global_load_dword {vr(WR+8)}, {vr(G_T1)}, s[8:9] offset:32')
        a(f'v_lshlrev_b32 {vr(G_T2)}, 1, {vr(G_T0)}')
        a(f'global_load_ushort {vr(WR+9)}, {vr(G_T2)}, s[18:19]')
        for z in range(10, 16):
            a(f'v_mov_b32 {vr(WR+z)}, 0')
    def w_writes(j, WR):
        a(f'v_cndmask_b32 {vr(WR+9)}, 0, {vr(WR+9)}, s[24:25]')
        a(f'v_mul_u32_u24 {vr(G_T2)}, 96, v0')
        for z in range(4):
            a(f'ds_write_b128 {vr(G_T2)}, {vr(WR+4*z,4)} offset:{j*24576 + 16*z}')
        for z in range(4, 6):
            a(f'ds_write_b128 {vr(G_T2)}, {vr(WR+12,4)} offset:{j*24576 + 16*z}')
    w_loads(0, 16); w_loads(1, 32);
    a('s_cmp_eq_u32 s89, 0')
    a('s_cbranch_scc0 K1_KV_N3')
    w_loads(2, 48)
    a('s_waitcnt vmcnt(0)')
    w_writes(2, 48)
    a.label('K1_KV_N3')
    a('s_waitcnt vmcnt(0)')
    w_writes(0, 16); w_writes(1, 32)
    for ks in range(6):
        a_load(a, 4, ks)
    gemm_tr_setup(a)
    a('s_waitcnt lgkmcnt(0)')
    a('s_barrier')
    a(f's_lshr_b32 s13, s12, 5')
    a(f'v_add_u32 {vr(G_T0)}, s13, {vr(G_W)}')
    a(f'v_lshrrev_b32 {vr(G_T1)}, 5, {vr(G_T0)}')
    a(f'v_and_b32 {vr(G_T0)}, 31, {vr(G_T0)}')
    a(f's_mov_b32 s14, {PH_BYTES}')
    a(f'v_mul_lo_u32 v13, {vr(G_T1)}, s14')
    a(f'v_mov_b32 v14, {vr(G_T0)}')
    ws_ptr(a, 16, 6, WS_KVF)
    a('s_cmp_eq_u32 s15, 1')
    a('s_cbranch_scc1 K1_KV_V')
    gemm_main(a, 4, swap=True)
    A0, A1 = G_ACC, G_ACC + 12
    KM = G_FREE
    a(f'v_max3_f32 v{KM}, abs(v{A0}), abs(v{A0+1}), abs(v{A0+2})')
    a(f'v_max3_f32 v{KM}, v{KM}, abs(v{A0+3}), abs(v{A1})')
    a(f'v_max3_f32 v{KM}, v{KM}, abs(v{A1+1}), abs(v{A1+2})')
    a(f'v_max_f32 v{KM}, v{KM}, abs(v{A1+3})')
    a(f'v_max3_f32 v{KM+1}, abs(v{A0+4}), abs(v{A0+5}), abs(v{A1+4})')
    a(f'v_max_f32 v{KM+1}, v{KM+1}, abs(v{A1+5})')
    a(f'v_cmp_eq_u32 vcc, 0, {vr(G_G)}')
    a('s_nop 1')
    a(f'v_cndmask_b32 v{KM+1}, 0, v{KM+1}, vcc')
    a(f'v_max_f32 v{KM}, v{KM}, v{KM+1}')
    for sh in (1, 2, 4, 8):
        a('s_nop 1')
        a(f'v_max_f32_dpp v{KM}, v{KM}, v{KM} row_ror:{sh} row_mask:0xf bank_mask:0xf')
    a('s_nop 1')
    a(f'v_readlane_b32 s26, v{KM}, 0')
    a(f'v_readlane_b32 s27, v{KM}, 16')
    a(f'v_readlane_b32 s28, v{KM}, 32')
    a(f'v_readlane_b32 s29, v{KM}, 48')
    a('s_nop 1')
    a(f'v_mov_b32 v{KM}, s26')
    a(f'v_max_f32 v{KM}, s27, v{KM}')
    a(f'v_max_f32 v{KM}, s28, v{KM}')
    a(f'v_max_f32 v{KM}, s29, v{KM}')
    ws_ptr(a, 26, 6, WS_KMAX)
    a(f'v_mov_b32 v{KM+1}, s13')
    a(f'v_add_u32 v{KM+1}, {vr(G_W)}, v{KM+1}')
    a(f'v_lshlrev_b32 v{KM+1}, 2, v{KM+1}')
    a(f'global_store_dword v{KM+1}, v{KM}, s[26:27]')
    a(f'v_lshl_add_u32 {vr(G_T2)}, v14, 10, v13')
    a(f'v_lshrrev_b32 {vr(G_T3)}, 1, {vr(G_G)}')
    a(f'v_lshl_add_u32 {vr(G_T2)}, {vr(G_T3)}, 9, {vr(G_T2)}')
    a(f'v_lshl_add_u32 {vr(G_T2)}, {vr(G_I)}, 4, {vr(G_T2)}')
    a(f'v_and_b32 {vr(G_T3)}, 1, {vr(G_G)}')
    a(f'v_lshl_add_u32 {vr(G_T2)}, {vr(G_T3)}, 3, {vr(G_T2)}')
    for kt in range(2):
        r = G_ACC + 12*kt
        a(f'v_cvt_pk_bf16_f32 v{r}, v{r}, v{r+1}')
        a(f'v_cvt_pk_bf16_f32 v{r+1}, v{r+2}, v{r+3}')
        a(f'global_store_dwordx2 {vr(G_T2)}, {vr(r,2)}, s[16:17] offset:{KF1_OFF + kt*256}')
    a(f'v_cmp_eq_u32 vcc, 0, {vr(G_G)}')
    a('s_and_saveexec_b64 s[20:21], vcc')
    a(f'v_lshl_add_u32 {vr(G_T2)}, v14, 8, v13')
    a(f'v_lshl_add_u32 {vr(G_T2)}, {vr(G_I)}, 3, {vr(G_T2)}')
    a(f'v_add_u32 {vr(G_T2)}, {KF2_OFF}, {vr(G_T2)}')
    ws_ptr(a, 18, 6, WS_G)
    a(f'v_lshl_add_u32 {vr(G_T1)}, {vr(G_W)}, 5, {vr(G_I)}')
    a(f'v_add_u32 {vr(G_T1)}, s12, {vr(G_T1)}')
    a(f'v_lshlrev_b32 {vr(G_T1)}, 2, {vr(G_T1)}')
    for kt in range(2):
        r = G_ACC + 4 + 12*kt
        a(f'v_cvt_pk_bf16_f32 v{r}, v{r}, v{r+1}')
        a(f'v_mov_b32 v{r+1}, 0x3f80')
        a(f'global_store_dwordx2 {vr(G_T2)}, {vr(r,2)}, s[16:17] offset:{kt*128}')
        bf16r(a, r+2, G_T3)
        a(f'v_mul_f32 v{r+3}, {f32bits(-LOG2E)}, v{r+2}')
        a(f'v_exp_f32 v{r+3}, v{r+3}')
        a('s_nop 0')
        a(f'v_add_f32 v{r+3}, 1.0, v{r+3}')
        a(f'v_rcp_f32 v{r+3}, v{r+3}')
        a('s_nop 0')
        bf16r(a, r+3, G_T3)
        a(f'global_store_dword {vr(G_T1)}, v{r+3}, s[18:19] offset:{kt*64}')
    tl_end(a, 0); a('s_endpgm')
    a.label('K1_KV_V')
    gemm_main(a, 4, swap=False)
    a(f'v_mul_lo_u32 {vr(G_T2)}, v14, s91')
    a(f'v_add_u32 {vr(G_T2)}, v13, {vr(G_T2)}')
    a(f'v_and_b32 {vr(G_T3)}, 1, {vr(G_G)}')
    a(f'v_mul_u32_u24 {vr(G_T3)}, 18, {vr(G_T3)}')
    a(f'v_add_u32 {vr(G_T3)}, {vr(G_I)}, {vr(G_T3)}')
    a(f'v_lshl_add_u32 {vr(G_T2)}, {vr(G_T3)}, 4, {vr(G_T2)}')
    a(f'v_lshrrev_b32 {vr(G_T3)}, 1, {vr(G_G)}')
    a(f'v_lshl_add_u32 {vr(G_T2)}, {vr(G_T3)}, 3, {vr(G_T2)}')
    a(f'v_add_u32 {vr(G_T2)}, {VF_OFF}, {vr(G_T2)}')
    for nt in range(2):
        if nt == 1:
            a(f'v_cmp_gt_u32 vcc, 2, {vr(G_I)}')
            a('s_and_saveexec_b64 s[20:21], vcc')
        for mt in range(2):
            r = G_ACC + 12*mt + 4*nt
            a(f'v_cvt_pk_bf16_f32 v{r}, v{r}, v{r+1}')
            a(f'v_cvt_pk_bf16_f32 v{r+1}, v{r+2}, v{r+3}')
            a(f'global_store_dwordx2 {vr(G_T2)}, {vr(r,2)}, s[16:17] offset:{mt*576 + nt*256}')
    tl_end(a, 0); a('s_endpgm')

    a.label('K1_KGEN')
    load_ptr(a, 8, A_LOGA); load_ptr(a, 10, A_AIM); load_ptr(a, 12, A_CRE); load_ptr(a, 14, A_CIM); load_ptr(a, 16, A_LOGDT)
    L, W = 1, 2
    VDT, A2, BB, CRr, CIi = 4, 5, 6, 7, 8
    ZR, ZI = 10, 11
    FR, FI = 12, 13
    XR, XI = 14, 15
    YR, YI = 16, 17
    VWA, VWB = 9, 18
    T = 20
    a(f'v_and_b32 v{L}, 63, v0')
    a(f'v_lshrrev_b32 v{W}, 6, v0')
    a('s_nop 1')
    a(f'v_readfirstlane_b32 s89, v{W}')
    a(f'v_and_b32 v{T}, 1, v{W}')
    a(f'v_lshl_add_u32 v{T}, v{T}, 6, v{L}')
    a(f'v_lshlrev_b32 v{T+1}, 1, v{T}')
    a('s_mul_i32 s30, s2, 2')
    a('s_lshl_b32 s3, s30, 8')
    a(f'v_add_u32 v{T+1}, s3, v{T+1}')
    a('s_lshl_b32 s3, s30, 1')
    a(f'v_mov_b32 v{T+2}, s3')
    a('s_waitcnt lgkmcnt(0)')
    PR = 120
    for cc in range(KG_CH):
        a(f'global_load_ushort v{PR+5*cc}, v{T+2}, s[16:17] offset:{2*cc}')
        a(f'global_load_ushort v{PR+5*cc+1}, v{T+1}, s[8:9] offset:{256*cc}')
        a(f'global_load_ushort v{PR+5*cc+2}, v{T+1}, s[10:11] offset:{256*cc}')
        a(f'global_load_ushort v{PR+5*cc+3}, v{T+1}, s[12:13] offset:{256*cc}')
        a(f'global_load_ushort v{PR+5*cc+4}, v{T+1}, s[14:15] offset:{256*cc}')
    NB4 = 119
    a(f'v_lshlrev_b32 v{NB4}, 2, v{T}')
    a(f'v_lshlrev_b32 v{T+3}, 2, v{T}')
    a(f's_mov_b32 s20, {f32bits(LOG2E)}')
    a(f's_mov_b32 s21, {f32bits(1.0/(2*math.pi))}')
    a('s_lshr_b32 s22, s89, 1')
    for cc in range(KG_CH):
        a(f's_add_u32 s31, s30, {cc}')
        a(f's_waitcnt vmcnt({0})')
        for k5, v in enumerate((VDT, A2, BB, CRr, CIi)):
            a(f'v_lshlrev_b32 v{v}, 16, v{PR+5*cc+k5}')
        a(f'v_mov_b32 v{T+3}, v{NB4}')
        if cc == 0: stamp(a, 1)
        a(f'v_mul_f32 v{VDT}, s20, v{VDT}')
        a(f'v_mul_f32 v{A2}, s20, v{A2}')
        a(f'v_exp_f32 v{VDT}, v{VDT}')
        a(f'v_exp_f32 v{A2}, v{A2}')
        a('s_nop 0')
        bf16r(a, VDT, T)
        bf16r(a, A2, T)
        a(f'v_mul_f32 v{A2}, v{VDT}, v{A2}')
        a(f'v_mul_f32 v{BB}, v{VDT}, v{BB}')
        a(f'v_mul_f32 v{A2}, s20, v{A2}')
        a(f'v_mul_f32 v{BB}, s21, v{BB}')
        a(f'v_mul_f32 v{CRr}, v{VDT}, v{CRr}')
        a(f'v_mul_f32 v{CIi}, v{VDT}, v{CIi}')
        a(f'v_add_f32 v{CRr}, v{CRr}, v{CRr}')
        a(f'v_add_f32 v{CIi}, v{CIi}, v{CIi}')
        def zpow(dr, di, p, conj):
            a(f'v_mul_f32 v{T}, {f32bits(-float(p))}, v{A2}')
            a(f'v_mul_f32 v{T+1}, {f32bits(float(p))}, v{BB}')
            a(f'v_exp_f32 v{T}, v{T}')
            a(f'v_fract_f32 v{T+1}, v{T+1}')
            a(f'v_cos_f32 v{dr}, v{T+1}')
            a(f'v_sin_f32 v{di}, v{T+1}')
            a('s_nop 0')
            a(f'v_mul_f32 v{dr}, v{T}, v{dr}')
            if conj: a(f'v_mul_f32 v{di}, -v{T}, v{di}')
            else:    a(f'v_mul_f32 v{di}, v{T}, v{di}')
        def cmul_conjC(dr, di, zr, zi):
            a(f'v_mul_f32 v{dr}, v{CRr}, v{zr}')
            a(f'v_mul_f32 v{di}, v{CRr}, v{zi}')
            a(f'v_fma_f32 v{dr}, v{CIi}, v{zi}, v{dr}')
            a(f'v_fma_f32 v{di}, -v{CIi}, v{zr}, v{di}')
        zpow(ZR, ZI, 32, True)
        FA_LDS, FB_LDS = 0, 64*KG_ROW
        a('s_cmp_eq_u32 s22, 0')
        a(f's_cbranch_scc0 K1_KG_P1_{cc}')
        zpow(FR, FI, 1, False)
        a(f'v_mov_b32 v{XR}, v{CRr}')
        a(f'v_sub_f32 v{XI}, 0, v{CIi}')
        a(f'v_mov_b32 v{YR}, v{FR}')
        a(f'v_mov_b32 v{YI}, v{FI}')
        a(f'v_mov_b32 v{VWA}, v{T+3}')
        a(f'v_add_u32 v{VWB}, {FB_LDS}, v{T+3}')
        def step(sr_, si_, mr, mi, t0):
            a(f'v_pk_mul_f32 v[{t0}:{t0+1}], v[{sr_}:{si_}], v[{mr}:{mi}] op_sel_hi:[1,0]')
            a(f'v_pk_fma_f32 v[{sr_}:{si_}], v[{sr_}:{si_}], v[{mr}:{mi}], v[{t0}:{t0+1}] op_sel:[1,1,0] op_sel_hi:[0,1,1] neg_lo:[1,0,0]')
        for k in range(32):
            if k < 16:
                a(f'v_cvt_pk_bf16_f32 v{T+4}, v{XR}, v{XI}')
                a(f'ds_write_b32 v{VWA}, v{T+4} offset:{k*KG_ROW}')
            a(f'v_cvt_pk_bf16_f32 v{T+5}, v{YR}, v{YI}')
            a(f'ds_write_b32 v{VWB}, v{T+5} offset:{k*KG_ROW}')
            if k < 15: step(XR, XI, ZR, ZI, T+6)
            if k < 31: step(YR, YI, FR, FI, T+8)
        a(f's_branch K1_KG_J_{cc}')
        a.label(f'K1_KG_P1_{cc}')
        zpow(FR, FI, 512, True)
        cmul_conjC(XR, XI, FR, FI)
        zpow(FR, FI, 1280, True)
        cmul_conjC(YR, YI, FR, FI)
        a(f'v_add_u32 v{VWA}, {16*KG_ROW}, v{T+3}')
        a(f'v_add_u32 v{VWB}, {40*KG_ROW}, v{T+3}')
        for k in range(24):
            a(f'v_cvt_pk_bf16_f32 v{T+4}, v{XR}, v{XI}')
            a(f'ds_write_b32 v{VWA}, v{T+4} offset:{k*KG_ROW}')
            a(f'v_cvt_pk_bf16_f32 v{T+5}, v{YR}, v{YI}')
            a(f'ds_write_b32 v{VWB}, v{T+5} offset:{k*KG_ROW}')
            if k < 23:
                step(XR, XI, ZR, ZI, T+6)
                step(YR, YI, ZR, ZI, T+8)
        a.label(f'K1_KG_J_{cc}')
        if cc == 0: stamp(a, 2)
        a('s_waitcnt lgkmcnt(0)')
        a('s_barrier')
        H, I = 3, 19
        D = 32
        FAr, FBr = 48, 80
        a(f'v_lshrrev_b32 v{H}, 5, v{L}')
        a(f'v_and_b32 v{I}, 31, v{L}')
        a(f's_movk_i32 s3, {KG_ROW}')
        a(f'v_and_b32 v{T}, 1, v{W}')
        a(f'v_lshl_add_u32 v{T}, v{T}, 5, v{I}')
        a(f'v_mul_lo_u32 v{T}, v{T}, s3')
        a(f'v_lshl_add_u32 v{T}, v{H}, 4, v{T}')
        a(f's_lshl_b32 s23, s22, 8')
        a(f'v_add_u32 v{T}, s23, v{T}')
        a(f'v_mul_lo_u32 v{T+1}, v{I}, s3')
        a(f'v_lshl_add_u32 v{T+1}, v{H}, 4, v{T+1}')
        a(f'v_add_u32 v{T+1}, s23, v{T+1}')
        a(f'v_add_u32 v{T+1}, {FB_LDS}, v{T+1}')
        for s in range(8):
            a(f'ds_read_b128 {vr(FAr+4*s,4)}, v{T} offset:{32*s}')
            a(f'ds_read_b128 {vr(FBr+4*s,4)}, v{T+1} offset:{32*s}')
        for s in range(8):
            a(f's_waitcnt lgkmcnt({min(15, 2*(7-s))})')
            C = vr(D,16) if s else '0'
            a(f'v_mfma_f32_32x32x16_bf16 {vr(D,16)}, {vr(FAr+4*s,4)}, {vr(FBr+4*s,4)}, {C}')
        if cc == 0: stamp(a, 3)
        a('s_barrier')
        a(f's_mul_i32 s24, s22, 8208')
        a(f'v_lshlrev_b32 v{T}, 9, v{H}')
        a(f'v_lshl_add_u32 v{T}, v{I}, 2, v{T}')
        a(f'v_add_u32 v{T}, s24, v{T}')
        a('s_and_b32 s25, s89, 1')
        a('s_lshl_b32 s25, s25, 12')
        a(f'v_add_u32 v{T}, s25, v{T}')
        a('s_nop 7')
        for r in range(16):
            q, ii = divmod(r, 4)
            a(f'ds_write_b32 v{T}, v{D+r} offset:{4 + 1024*q + 128*ii}')
        a('s_cmp_eq_u32 s22, 0')
        a(f's_cbranch_scc0 K1_KG_NS_{cc}')
        a(f'v_mov_b32 v{T+2}, v{CRr}')
        for sh in (1, 2, 4, 8):
            a('s_nop 1')
            a(f'v_add_f32_dpp v{T+2}, v{T+2}, v{T+2} row_ror:{sh} row_mask:0xf bank_mask:0xf')
        a('s_nop 1')
        a(f'v_readlane_b32 s26, v{T+2}, 0')
        a(f'v_readlane_b32 s27, v{T+2}, 16')
        a(f'v_readlane_b32 s28, v{T+2}, 32')
        a(f'v_readlane_b32 s29, v{T+2}, 48')
        a('s_nop 1')
        a(f'v_mov_b32 v{T+2}, s26')
        a(f'v_add_f32 v{T+2}, s27, v{T+2}')
        a(f'v_add_f32 v{T+2}, s28, v{T+2}')
        a(f'v_add_f32 v{T+2}, s29, v{T+2}')
        a('s_and_b32 s25, s89, 1')
        a('s_mul_i32 s25, s25, 8208')
        a(f'v_mov_b32 v{T+3}, s25')
        a(f'ds_write_b32 v{T+3}, v{T+2}')
        a.label(f'K1_KG_NS_{cc}')
        a('s_waitcnt lgkmcnt(0)')
        a('s_barrier')
        if cc == 0: stamp(a, 4)
        G = 24
        a(f'v_lshlrev_b32 v{T}, 3, v0')
        a(f'v_sub_u32 v{T+1}, 2047, v{T}')
        for e in range(9):
            a(f'v_subrev_u32 v{G+e}, {e}, v{T+1}')
        a(f'v_cmp_gt_i32 vcc, 0, v{G+8}')
        a(f'v_max_i32 v{G+8}, 0, v{G+8}')
        for e in range(9):
            a(f'v_cvt_f32_u32 v{G+e}, v{G+e}')
        for e in range(9):
            bf16r(a, G+e, T+2)
        for e in range(9):
            a(f'v_cvt_u32_f32 v{G+e}, v{G+e}')
            a(f'v_lshlrev_b32 v{G+e}, 2, v{G+e}')
        V = 40
        for e in range(9):
            a(f'ds_read_b32 v{V+2*e}, v{G+e}')
            a(f'ds_read_b32 v{V+2*e+1}, v{G+e} offset:8208')
        a('s_waitcnt lgkmcnt(0)')
        for e in range(9):
            a(f'v_add_f32 v{V+2*e}, v{V+2*e}, v{V+2*e+1}')
        a(f'v_cndmask_b32 v{V+16}, v{V+16}, 0, vcc')
        for e in range(0, 8, 2):
            a(f'v_cvt_pk_bf16_f32 v{60+e//2}, v{V+2*e}, v{V+2*(e+1)}')
            a(f'v_cvt_pk_bf16_f32 v{64+e//2}, v{V+2*(e+1)}, v{V+2*(e+2)}')
        for i in range(8):
            a(f'v_mov_b32 v{136+8*cc+i}, v{60+i}')
        if cc == 0: stamp(a, 5)
        a('s_barrier')
    ws_ptr(a, 16, 6, WS_KT)
    a(f's_mul_i32 s3, s30, {KT_ROW}')
    a(f'v_lshlrev_b32 v{T+1}, 4, v0')
    a(f'v_add_u32 v{T+1}, s3, v{T+1}')
    for cc in range(KG_CH):
        a(f'global_store_dwordx4 v{T+1}, v[{136+8*cc}:{139+8*cc}], s[16:17]')
        a(f'v_add_u32 v{T+2}, {KT_HALF}, v{T+1}')
        a(f'global_store_dwordx4 v{T+2}, v[{140+8*cc}:{143+8*cc}], s[16:17]')
        a(f'v_add_u32 v{T+1}, {KT_ROW}, v{T+1}')
    a(f'v_cmp_gt_u32 vcc, {16*KG_CH}, v0')
    a('s_and_saveexec_b64 s[32:33], vcc')
    a('s_cbranch_execz K1_KG_E')
    for i in range(4):
        a(f'v_mov_b32 v{68+i}, 0')
    a(f'v_lshrrev_b32 v{T+1}, 3, v0')
    a(f'v_mul_u32_u24 v{T+1}, {KT_HALF}, v{T+1}')
    a(f'v_and_b32 v{T+2}, 7, v0')
    a(f'v_lshl_add_u32 v{T+1}, v{T+2}, 4, v{T+1}')
    a(f'v_add_u32 v{T+1}, s3, v{T+1}')
    a(f'v_add_u32 v{T+1}, 4096, v{T+1}')
    a(f'global_store_dwordx4 v{T+1}, v[68:71], s[16:17]')
    a.label('K1_KG_E')
    a('s_mov_b64 exec, -1')
    if INSTR:
        a('s_cmp_lt_u32 s2, 8')
        a('s_cbranch_scc0 K1_KG_ND')
        a('s_cmp_eq_u32 s89, 0')
        a('s_cbranch_scc0 K1_KG_ND')
        a('s_mov_b32 s74, s2')
        dump_stamps(a, 5, None, None)
        a.label('K1_KG_ND')
    tl_end(a, 0); a('s_endpgm')

K2_GRID = 256
K2_THREADS = 704
CS = 4256
CONV_LDS0 = PH_USED
NCP = 4
CONV_SZ = NCP*CS + 2048 + 4096
K2_CNT = PH_USED + 3*CONV_SZ
K2_ZERO = K2_CNT + 16
K2_ONES = K2_ZERO + 2912
K2_LDS = K2_ONES + 2912
THR = 8.0

def gen_k2(a):
    kernel_header(a, 'attn_kernel')
    tl_start(a)
    stamp(a, 0)
    a('s_movk_i32 s90, 0x7fff')
    a(f's_cmp_ge_u32 s2, {K2_GRID}')
    a('s_cbranch_scc1 K2_END')
    load_ptr(a, 6, A_WS)
    load_ptr(a, 4, A_U)
    a('v_lshrrev_b32 v1, 6, v0')
    a('s_nop 0')
    a('v_readfirstlane_b32 s3, v1')
    a('s_nop 3')
    a('s_cmp_ge_u32 s3, 8')
    a('s_cbranch_scc1 K2_CONV')
    a('s_setprio 3')
    L, H, I = 1, 2, 3
    VK1, VK2, VV = 4, 5, 6
    VST, VGO = 7, 8
    VM, VMX, T0, T1, T2, T3 = 9, 10, 11, 12, 13, 14
    VBND = 152
    Q1, Q2 = 16, 20
    P = 24
    S = [32, 48]
    O = 64
    KA = [80, 84]; KB = [88, 92]; VA = [96, 104]
    STG = 112
    a(f'v_and_b32 v{L}, 63, v0')
    a(f'v_lshrrev_b32 v{H}, 5, v{L}')
    a(f'v_and_b32 v{I}, 31, v{L}')
    a('s_waitcnt lgkmcnt(0)')
    ws_ptr(a, 8, 6, WS_KVF)
    ws_ptr(a, 10, 6, WS_Q)
    ws_ptr(a, 12, 6, WS_O)
    a(f'v_lshlrev_b32 v{VST}, 4, v0')
    a(f'v_mov_b32 v{VGO}, v{VST}')
    def stage_loads():
        for j in range(10):
            if j == 9:
                a('s_cmp_lt_u32 s3, 4')
                lab = f'K2_SL{stage_loads.n}'
                a(f's_cbranch_scc0 {lab}')
            a(f'global_load_dwordx4 {vr(STG+4*j,4)}, v{VGO}, s[8:9]')
            if j == 9:
                a.label(lab)
                stage_loads.n += 1
            a(f'v_add_u32 v{VGO}, 8192, v{VGO}')
    stage_loads.n = 0
    def stage_writes(extra):
        a(f's_waitcnt vmcnt({extra})')
        for j in range(10):
            if j == 9:
                a('s_cmp_lt_u32 s3, 4')
                lab = f'K2_SW{stage_writes.n}'
                a(f's_cbranch_scc0 {lab}')
            a(f'ds_write_b128 v{VST}, {vr(STG+4*j,4)} offset:{j*8192}' if j < 8 else
              f'ds_write_b128 v{T3}, {vr(STG+4*j,4)} offset:{(j-8)*8192}')
            if j == 9:
                a.label(lab)
                stage_writes.n += 1
    stage_writes.n = 0
    a(f'v_add_u32 v{T3}, 65536, v{VST}')
    stage_loads()
    a('s_lshl_b32 s14, s2, 3')
    a('s_add_u32 s14, s14, s3')
    a('s_mul_i32 s14, s14, 1152')
    a(f'v_mul_u32_u24 v{T0}, 36, v{I}')
    a(f'v_add_u32 v{T0}, s14, v{T0}')
    a(f'v_lshl_add_u32 v{T1}, v{H}, 4, v{T0}')
    a(f'global_load_dwordx4 {vr(Q1,4)}, v{T1}, s[10:11]')
    a(f'global_load_dword v{Q2}, v{T0}, s[10:11] offset:32')
    a(f'v_mov_b32 v158, v{T0}')
    ws_ptr(a, 24, 6, WS_KMAX)
    a(f'v_lshlrev_b32 v{T0}, 2, v{L}')
    a(f'global_load_dword v{VBND}, v{T0}, s[24:25]')
    a(f'v_mov_b32 v{Q2+1}, 0')
    a(f'v_mov_b32 v{Q2+2}, 0')
    a(f'v_mov_b32 v{Q2+3}, 0')
    a('s_mov_b32 s16, -1')
    a('s_mov_b32 s17, 0')
    a('s_mov_b32 s18, 0x3ffff')
    a('s_mov_b32 s19, 0x3ffff')
    a(f'v_lshlrev_b32 v{VK1}, 4, v{L}')
    a(f'v_lshlrev_b32 v{VK2}, 3, v{I}')
    a(f'v_add_u32 v{VK2}, {KF2_OFF}, v{VK2}')
    a(f'v_mul_u32_u24 v{VV}, 18, v{H}')
    a(f'v_add_u32 v{VV}, v{I}, v{VV}')
    a(f'v_lshlrev_b32 v{VV}, 4, v{VV}')
    a(f'v_add_u32 v{VV}, {VF_OFF}, v{VV}')
    VS2, VSV, VK2B, VVB = 154, 155, 156, 157
    a(f'v_cmp_eq_u32 vcc, 0, v{H}')
    a(f'v_mov_b32 v{T0}, {K2_ZERO}')
    a(f'v_mov_b32 v{T1}, 512')
    a('s_nop 0')
    a(f'v_cndmask_b32 v{VK2}, v{T0}, v{VK2}, vcc')
    a(f'v_cndmask_b32 v{VS2}, 0, v{T1}, vcc')
    a(f'v_cmp_eq_u32 vcc, 18, v{I}')
    a(f'v_mov_b32 v{T1}, {K2_ONES}')
    a('s_nop 1')
    a(f'v_cndmask_b32 v{T0}, v{T0}, v{T1}, vcc')
    a(f'v_cmp_gt_u32 vcc, 18, v{I}')
    a(f'v_mov_b32 v{T1}, 2304')
    a('s_nop 1')
    a(f'v_cndmask_b32 v{VV}, v{T0}, v{VV}, vcc')
    a(f'v_cndmask_b32 v{VSV}, 0, v{T1}, vcc')
    a(f'v_mov_b32 v{VK2B}, v{VK2}')
    a(f'v_mov_b32 v{VVB}, v{VV}')
    a(f'v_and_b32 v{T0}, 255, v0')
    a(f'v_lshrrev_b32 v{T1}, 8, v0')
    a(f'v_mul_u32_u24 v{T2}, 2912, v{T1}')
    a(f'v_lshl_add_u32 v{T2}, v{T0}, 4, v{T2}')
    a(f'v_add_u32 v{T2}, {K2_ZERO}, v{T2}')
    a(f'v_mul_u32_u24 v{T1}, 0x3f80, v{T1}')
    a(f'v_lshl_or_b32 v{O}, v{T1}, 16, v{T1}')
    for z in range(1, 4):
        a(f'v_mov_b32 v{O+z}, v{O}')
    a(f'v_cmp_gt_u32 vcc, 182, v{T0}')
    a('s_and_saveexec_b64 s[28:29], vcc')
    a(f'ds_write_b128 v{T2}, {vr(O,4)}')
    a('s_mov_b64 exec, s[28:29]')
    for b in range(2):
        for z in range(4): a(f'v_mov_b32 v{KB[b]+z}, 0')
    a(f'v_cmp_eq_u32 vcc, 18, v{I}')
    a(f'v_mov_b32 v{T0}, 0x3f803f80')
    a('s_nop 1')
    a(f'v_cndmask_b32 v{T0}, 0, v{T0}, vcc')
    for b in range(2):
        for i in range(8):
            a(f'v_mov_b32 v{VA[b]+i}, v{T0}')
    for i in range(16):
        a(f'v_mov_b32 v{O+i}, 0')
    a(f'v_mov_b32 v{VM}, 0')
    a(f's_mov_b32 s20, 0xff7fffff')
    stage_writes(0)
    a(f'v_mov_b32 v15, {K2_CNT}')
    a(f'v_mov_b32 v{T0}, 0')
    a(f'ds_write_b32 v15, v{T0}')
    a(f'v_cmp_eq_u32 vcc, 0, v{H}')
    a('s_nop 1')
    a(f'v_cndmask_b32 v{Q2}, 0, v{Q2}, vcc')
    for sh in (1, 2, 4, 8):
        a('s_nop 1')
        a(f'v_max_f32_dpp v{VBND}, v{VBND}, v{VBND} row_ror:{sh} row_mask:0xf bank_mask:0xf')
    a('s_nop 1')
    a(f'v_readlane_b32 s26, v{VBND}, 0')
    a(f'v_readlane_b32 s27, v{VBND}, 16')
    a(f'v_readlane_b32 s28, v{VBND}, 32')
    a(f'v_readlane_b32 s29, v{VBND}, 48')
    a('s_nop 1')
    a(f'v_mov_b32 v{VBND}, s26')
    a(f'v_max_f32 v{VBND}, s27, v{VBND}')
    a(f'v_max_f32 v{VBND}, s28, v{VBND}')
    a(f'v_max_f32 v{VBND}, s29, v{VBND}')
    a(f'v_mov_b32 v{VBND+1}, 0')
    for r in (Q1, Q1+1, Q1+2, Q1+3, Q2):
        a(f'v_lshlrev_b32 v{T0}, 16, v{r}')
        a(f'v_and_b32 v{T1}, 0xffff0000, v{r}')
        a(f'v_add_f32 v{VBND+1}, abs(v{T0}), v{VBND+1}')
        a(f'v_add_f32 v{VBND+1}, abs(v{T1}), v{VBND+1}')
    a(f'v_mov_b32 v{T0}, v{VBND+1}')
    a(f'v_mov_b32 v{T1}, v{VBND+1}')
    a('s_nop 1')
    a(f'v_permlane32_swap_b32 v{T0}, v{T1}')
    a('s_nop 1')
    a(f'v_add_f32 v{T0}, v{T0}, v{T1}')
    a(f'v_mul_f32 v{VBND}, v{VBND}, v{T0}')
    a(f'v_mul_f32 v{VBND}, 0x3f840000, v{VBND}')
    a('s_waitcnt lgkmcnt(0)')
    a('s_barrier')
    stage_loads()
    stamp(a, 1)

    def k_reads(b, off):
        a(f'ds_read_b128 {vr(KA[b],4)}, v{VK1} offset:{off*1024}')
        a(f'ds_read_b64 {vr(KB[b],2)}, v{VK2} offset:{off*256}')
    def v_reads(b, off):
        a(f'ds_read_b128 {vr(VA[b],4)}, v{VV} offset:{off*1152}')
        a(f'ds_read_b128 {vr(VA[b]+4,4)}, v{VV} offset:{off*1152+576}')
    def qk(b, sb):
        a(f'v_mfma_f32_32x32x16_bf16 {vr(S[sb],16)}, {vr(KA[b],4)}, {vr(Q1,4)}, 0')
        a(f'v_mfma_f32_32x32x16_bf16 {vr(S[sb],16)}, {vr(KB[b],4)}, {vr(Q2,4)}, {vr(S[sb],16)}')

    def tile_body(ph, b, safe):
        nb = b ^ 1
        Sb = S[b]
        a('s_waitcnt lgkmcnt(2)')
        a(f'v_mfma_f32_32x32x16_bf16 {vr(S[nb],16)}, {vr(KA[nb],4)}, {vr(Q1,4)}, 0')
        if safe:
            a(f'v_max3_f32 v{VMX}, v{Sb}, v{Sb+1}, v{Sb+2}')
            for i in range(3, 9, 2):
                a(f'v_max3_f32 v{VMX}, v{VMX}, v{Sb+i}, v{Sb+i+1}')
            a(f'v_mfma_f32_32x32x16_bf16 {vr(S[nb],16)}, {vr(KB[nb],4)}, {vr(Q2,4)}, {vr(S[nb],16)}')
            for i in range(9, 15, 2):
                a(f'v_max3_f32 v{VMX}, v{VMX}, v{Sb+i}, v{Sb+i+1}')
            a(f'v_max_f32 v{VMX}, v{VMX}, v{Sb+15}')
            a(f'v_cmp_lt_f32 vcc, s20, v{VMX}')
            a(f's_cbranch_vccnz K2_SLOW_{ph}_{b}')
            a.label(f'K2_BACK_{ph}_{b}')
            for i in range(8):
                a(f'v_exp_f32 v{Sb+i}, v{Sb+i}')
        else:
            for i in range(4):
                a(f'v_exp_f32 v{Sb+i}, v{Sb+i}')
            a(f'v_mfma_f32_32x32x16_bf16 {vr(S[nb],16)}, {vr(KB[nb],4)}, {vr(Q2,4)}, {vr(S[nb],16)}')
            for i in range(4, 8):
                a(f'v_exp_f32 v{Sb+i}, v{Sb+i}')
        k_reads(b, b + 2)
        v_reads(nb, b + 1)
        for i in range(4):
            a(f'v_cvt_pk_bf16_f32 v{P+i}, v{Sb+2*i}, v{Sb+2*i+1}')
        for i in range(8, 12):
            a(f'v_exp_f32 v{Sb+i}, v{Sb+i}')
        a('s_waitcnt lgkmcnt(4)')
        a(f'v_mfma_f32_32x32x16_bf16 {vr(O,16)}, {vr(VA[b],4)}, {vr(P,4)}, {vr(O,16)}')
        for i in range(12, 16):
            a(f'v_exp_f32 v{Sb+i}, v{Sb+i}')
        a('s_nop 0')
        for i in range(4, 8):
            a(f'v_cvt_pk_bf16_f32 v{P+i}, v{Sb+2*i}, v{Sb+2*i+1}')
        a('s_nop 1')
        a(f'v_mfma_f32_32x32x16_bf16 {vr(O,16)}, {vr(VA[b]+4,4)}, {vr(P+4,4)}, {vr(O,16)}')
    def loop_tail():
        a(f'v_add_u32 v{VK1}, 2048, v{VK1}')
        a(f'v_add_u32 v{VK2}, v{VS2}, v{VK2}')
        a(f'v_add_u32 v{VV}, v{VSV}, v{VV}')
        a('s_add_u32 s21, s21, 1')
        a('s_cmp_lt_u32 s21, 16')
    a('s_mov_b32 s23, 0')
    for phase in range(2):
        ph = f'P{phase}'
        k_reads(0, 0)
        k_reads(1, 1)
        v_reads(0, 0)
        a('s_waitcnt lgkmcnt(4)')
        qk(0, 0)
        a('s_nop 15')
        a('s_mov_b32 s21, 0')
        a('s_cmp_eq_u32 s23, 1')
        a(f's_cbranch_scc1 K2_FLOOP_{ph}')
        a.label(f'K2_LOOP_{ph}')
        for b in range(2):
            tile_body(ph, b, True)
        a(f'v_sub_f32 v{T0}, v{VBND}, v{VM}')
        a(f'v_cmp_nle_f32 vcc, v{T0}, 0x42700000' if False else f'v_cmp_lt_f32 vcc, 0x42700000, v{T0}')
        a(f'v_cmp_u_f32 s[26:27], v{T0}, v{T0}')
        a('s_or_b64 vcc, vcc, s[26:27]')
        a('s_cmp_eq_u64 vcc, 0')
        a('s_cselect_b32 s23, 1, 0')
        loop_tail()
        a(f's_cbranch_scc0 K2_LX_{ph}')
        a('s_cmp_eq_u32 s23, 1')
        a(f's_cbranch_scc0 K2_LOOP_{ph}')
        a.label(f'K2_FLOOP_{ph}')
        for b in range(2):
            tile_body(ph, b, False)
        loop_tail()
        a(f's_cbranch_scc1 K2_FLOOP_{ph}')
        a.label(f'K2_LX_{ph}')
        stamp(a, 2+2*phase)
        if phase == 0:
            def lds_sync(k):
                a('s_waitcnt lgkmcnt(0)')
                a(f'v_mov_b32 v{T0}, 1')
                a(f'ds_add_u32 v15, v{T0}')
                a.label(f'K2_SPIN{k}')
                a(f'ds_read_b32 v{T0}, v15')
                a('s_waitcnt lgkmcnt(0)')
                a(f'v_readfirstlane_b32 s22, v{T0}')
                a(f's_cmp_ge_u32 s22, {512*k}')
                a(f's_cbranch_scc1 K2_SPINX{k}')
                a('s_sleep 1')
                a(f's_branch K2_SPIN{k}')
                a.label(f'K2_SPINX{k}')
            lds_sync(1)
            stage_writes(0)
            a(f'v_subrev_u32 v{VK1}, {16*2048}, v{VK1}')
            a(f'v_mov_b32 v{VK2}, v{VK2B}')
            a(f'v_mov_b32 v{VV}, v{VVB}')
            lds_sync(2)
            stamp(a, 3)
    a('s_branch K2_FIN')
    for phase in range(2):
        ph = f'P{phase}'
        for b in range(2):
            nb = b ^ 1
            Sb, Sn = S[b], S[nb]
            a.label(f'K2_SLOW_{ph}_{b}')
            a(f'v_mov_b32 v{T0}, v{VMX}')
            a(f'v_mov_b32 v{T1}, v{VMX}')
            a('s_nop 1')
            a(f'v_permlane32_swap_b32 v{T0}, v{T1}')
            a('s_nop 1')
            a(f'v_max_f32 v{T0}, v{T0}, v{T1}')
            a('s_cmp_lt_i32 s20, 0')
            a(f's_cbranch_scc1 K2_SL1_{ph}_{b}')
            a(f'v_max_f32 v{T0}, 0, v{T0}')
            a.label(f'K2_SL1_{ph}_{b}')
            a(f's_mov_b32 s20, {f32bits(THR)}')
            a(f'v_add_f32 v{T1}, v{VM}, v{T0}')
            bf16r(a, T1, T0)
            a(f'v_sub_f32 v{T0}, v{T1}, v{VM}')
            a(f'v_mov_b32 v{VM}, v{T1}')
            a('s_nop 15')
            a('s_nop 7')
            for i in range(16):
                a(f'v_sub_f32 v{Sb+i}, v{Sb+i}, v{T0}')
                a(f'v_sub_f32 v{Sn+i}, v{Sn+i}, v{T0}')
            a(f'v_sub_f32 v{T0}, 0, v{T0}')
            a(f'v_exp_f32 v{T0}, v{T0}')
            a('s_nop 0')
            for i in range(16):
                a(f'v_mul_f32 v{O+i}, v{O+i}, v{T0}')
            a(f'v_xor_b32 v{T1}, 0x80000000, v{T1}')
            a(f'v_lshrrev_b32 v{T1}, 16, v{T1}')
            a('s_mov_b64 exec, s[16:17]')
            a(f'v_mov_b32 v{Q2+1}, v{T1}')
            a('s_mov_b64 exec, -1')
            a('s_nop 1')
            a(f's_branch K2_BACK_{ph}_{b}')
    a.label('K2_FIN')
    a('s_nop 15')
    a('s_nop 3')
    a(f'v_mov_b32 v{T0}, v{O+10}')
    a(f'v_mov_b32 v{T1}, v{O+10}')
    a('s_nop 1')
    a(f'v_permlane32_swap_b32 v{T0}, v{T1}')
    a('s_nop 1')
    a(f'v_rcp_f32 v{T0}, v{T0}')
    a('s_nop 0')
    for i in range(10):
        a(f'v_mul_f32 v{O+i}, v{O+i}, v{T0}')
    for i in range(0, 10, 2):
        a(f'v_cvt_pk_bf16_f32 v{P+i//2}, v{O+i}, v{O+i+1}')
    a(f'v_lshl_add_u32 v{T1}, v{H}, 3, v158')
    a(f'global_store_dwordx2 v{T1}, {vr(P,2)}, s[12:13]')
    a(f'global_store_dwordx2 v{T1}, {vr(P+2,2)}, s[12:13] offset:16')
    a('s_mov_b64 exec, s[16:17]')
    a(f'global_store_dword v{T1}, v{P+4}, s[12:13] offset:32')
    if INSTR:
        a('s_memtime s[70:71]')
        a('s_cmp_lt_u32 s2, 1')
        a('s_cbranch_scc0 K2_END')
        a('s_mov_b32 s74, s3')
        dump_stamps(a, 5, None, None)
    tl_end(a, 1); a('s_endpgm')

    a.label('K2_CONV')
    a('s_sub_u32 s3, s3, 8')
    a('s_lshl_b32 s14, s3, 8')
    a('s_add_u32 s14, s14, s2')
    a('s_cmp_ge_u32 s14, 576')
    a('s_cbranch_scc1 K2_END2')
    L, H, I = 1, 2, 3
    VA_, VB_ = 4, 5
    a(f'v_and_b32 v{L}, 63, v0')
    a(f'v_lshrrev_b32 v{H}, 5, v{L}')
    a(f'v_and_b32 v{I}, 31, v{L}')
    a('s_waitcnt lgkmcnt(0)')
    ws_ptr(a, 8, 6, WS_KT)
    ws_ptr(a, 10, 6, WS_UT)
    ws_ptr(a, 12, 6, WS_YT)
    a(f's_mul_i32 s15, s3, {CONV_SZ}')
    a(f's_add_u32 s15, s15, {CONV_LDS0}')
    a(f'v_lshlrev_b32 v6, 4, v{L}')
    a('s_mov_b32 s24, 0x3ff')
    a('s_mov_b32 s25, 0')
    a(f's_mul_i32 s16, s14, {KT_ROW}')
    a(f'v_add_u32 v9, s15, v6')
    for c in range(NCP):
        b, off = c & 1, 4*(c >> 1)
        a(f's_add_u32 s17, s16, {b*KT_HALF + off}')
        a(f'v_add_u32 v7, s17, v6')
        for j in range(4):
            a(f'global_load_dwordx4 {vr(16 + c*20 + 4*j,4)}, v7, s[8:9] offset:{j*1024}')
        a(f'v_add_u32 v7, 4096, v7')
        a(f'global_load_dwordx4 {vr(16 + c*20 + 16,4)}, v7, s[8:9]')
    a('s_lshl_b32 s17, s14, 12')
    a('v_add_u32 v7, s17, v6')
    for j in range(4):
        a(f'global_load_dwordx4 {vr(96+4*j,4)}, v7, s[10:11] offset:{j*1024}')
    a('s_barrier')
    for i in range(4):
        a(f'v_mov_b32 v{112+i}, 0')
    a(f'ds_write_b128 v9, v[112:115] offset:{NCP*CS}')
    a(f'ds_write_b128 v9, v[112:115] offset:{NCP*CS+1024}')
    a('s_waitcnt vmcnt(0)')
    for c in range(NCP):
        for j in range(4):
            a(f'ds_write_b128 v9, {vr(16 + c*20 + 4*j,4)} offset:{c*CS + j*1024}')
    a('s_mov_b64 exec, s[24:25]')
    for c in range(NCP):
        a(f'ds_write_b128 v9, {vr(16 + c*20 + 16,4)} offset:{c*CS + 4096}')
    a('s_mov_b64 exec, -1')
    for j in range(4):
        a(f'ds_write_b128 v9, {vr(96+4*j,4)} offset:{NCP*CS + 2048 + j*1024}')
    a(f'v_lshlrev_b32 v10, 3, v{H}')
    a(f'v_sub_u32 v10, v10, v{I}')
    a(f'v_add_u32 v10, 2047, v10')
    a(f'v_and_b32 v11, 3, v10')
    a(f'v_sub_u32 v10, v10, v11')
    a(f'v_lshlrev_b32 v10, 1, v10')
    a(f's_movk_i32 s17, {CS}')
    a(f'v_mul_lo_u32 v11, v11, s17')
    a(f'v_add3_u32 v{VA_}, v10, v11, s15')
    a(f'v_lshlrev_b32 v{VB_}, 6, v{I}')
    a(f'v_lshl_add_u32 v{VB_}, v{H}, 4, v{VB_}')
    a(f'v_add_u32 v{VB_}, s15, v{VB_}')
    a(f'v_add_u32 v{VB_}, {NCP*CS + 2048}, v{VB_}')
    Y = [64, 80]
    FA = [16, 24]
    FBq = [32, 48]
    for i in range(32):
        a(f'v_mov_b32 v{64+i}, 0')
    a('s_waitcnt lgkmcnt(0)')
    def reads(buf, both):
        a(f'ds_read2_b64 {vr(FA[buf],4)}, v{VA_} offset0:0 offset1:1')
        a(f'ds_read2_b64 {vr(FA[buf]+4,4)}, v{VA_} offset0:4 offset1:5')
        if both:
            a(f'ds_read_b128 {vr(FBq[buf],4)}, v{VB_}')
            a(f'ds_read_b128 {vr(FBq[buf]+4,4)}, v{VB_} offset:32')
        a(f'ds_read_b128 {vr(FBq[buf]+8,4)}, v{VB_} offset:2048')
        a(f'ds_read_b128 {vr(FBq[buf]+12,4)}, v{VB_} offset:2080')
        a(f'v_subrev_u32 v{VA_}, 64, v{VA_}')
        a(f'v_subrev_u32 v{VB_}, 64, v{VB_}')
    def mfmas(buf, both):
        if both:
            a(f'v_mfma_f32_32x32x16_bf16 {vr(Y[0],16)}, {vr(FA[buf],4)}, {vr(FBq[buf],4)}, {vr(Y[0],16)}')
            a(f'v_mfma_f32_32x32x16_bf16 {vr(Y[0],16)}, {vr(FA[buf]+4,4)}, {vr(FBq[buf]+4,4)}, {vr(Y[0],16)}')
        a(f'v_mfma_f32_32x32x16_bf16 {vr(Y[1],16)}, {vr(FA[buf],4)}, {vr(FBq[buf]+8,4)}, {vr(Y[1],16)}')
        a(f'v_mfma_f32_32x32x16_bf16 {vr(Y[1],16)}, {vr(FA[buf]+4,4)}, {vr(FBq[buf]+12,4)}, {vr(Y[1],16)}')
    reads(0, True)
    a('s_mov_b32 s17, 0')
    a.label('K2_CV1')
    reads(1, True)
    a('s_waitcnt lgkmcnt(6)')
    mfmas(0, True)
    a('s_add_u32 s17, s17, 1')
    a('s_cmp_lt_u32 s17, 16')
    a('s_cbranch_scc0 K2_CV1X')
    reads(0, True)
    a('s_waitcnt lgkmcnt(6)')
    mfmas(1, True)
    a('s_branch K2_CV1')
    a.label('K2_CV1X')
    reads(0, False)
    a('s_waitcnt lgkmcnt(4)')
    mfmas(1, True)
    a('s_mov_b32 s17, 0')
    a.label('K2_CV2')
    reads(1, False)
    a('s_waitcnt lgkmcnt(4)')
    mfmas(0, False)
    a('s_add_u32 s17, s17, 1')
    a('s_cmp_lt_u32 s17, 16')
    a('s_cbranch_scc0 K2_CV2X')
    reads(0, False)
    a('s_waitcnt lgkmcnt(4)')
    mfmas(1, False)
    a('s_branch K2_CV2')
    a.label('K2_CV2X')
    a('s_waitcnt lgkmcnt(0)')
    mfmas(1, False)
    a('s_nop 15')
    a('s_nop 3')
    a(f'v_lshlrev_b32 v10, 6, v{I}')
    a(f'v_lshl_add_u32 v10, v{H}, 3, v10')
    a('s_lshl_b32 s16, s14, 12')
    a('v_add_u32 v10, s16, v10')
    for ct in range(2):
        for q in range(4):
            y = Y[ct] + 4*q
            a(f'v_cvt_pk_bf16_f32 v{y}, v{y}, v{y+1}')
            a(f'v_cvt_pk_bf16_f32 v{y+1}, v{y+2}, v{y+3}')
            a(f'global_store_dwordx2 v10, {vr(y,2)}, s[12:13] offset:{ct*2048 + q*16}')
    if TL:
        a('s_memrealtime s[82:83]')
        a('s_waitcnt lgkmcnt(0) vmcnt(0)')
        a('s_mul_i32 s78, s2, 3')
        a('s_add_u32 s78, s78, s3')
        a('s_lshl_b32 s78, s78, 4')
        a(f's_add_u32 s78, s78, {0x3040000}')
        a('v_mov_b32 v1, s78')
        a('v_mov_b32 v2, s80')
        a('v_mov_b32 v3, s82')
        a('global_store_dwordx2 v1, v[2:3], s[6:7]')
    a.label('K2_END2')
    a('s_endpgm')
    a.label('K2_END')
    tl_end(a, 1); a('s_endpgm')

K3_GRID = 192
K3_LDS = GEMM_LDS
def gen_k3(a):
    kernel_header(a, 'outp_kernel')
    tl_start(a)
    stamp(a, 0)
    a('s_movk_i32 s90, 0x7fff')
    a(f's_cmp_ge_u32 s2, {K3_GRID}')
    a('s_cbranch_scc1 K3_END')
    load_ptr(a, 6, A_WS); load_ptr(a, 8, A_WO); load_ptr(a, 10, A_DSKIP); load_ptr(a, 18, A_OUT)
    gemm_tile_map(a, 's2')
    gemm_lane_setup(a)
    gemm_a_setup(a, 12)
    a(f's_mov_b32 s86, {TRN_OFF}')
    a('s_waitcnt lgkmcnt(0)')
    stamp(a, 1)
    ws_ptr(a, 16, 6, WS_O)
    ws_ptr(a, 20, 6, WS_G)
    ws_ptr(a, 22, 6, WS_YT)
    ws_ptr(a, 24, 6, WS_UT)
    GV, YV, UV, DS = 208, 216, 228, 240
    R0 = 243
    gemm_stage_b_dma(a, 8, 13, 'K3')
    for ks in range(6):
        a_load(a, 16, ks)
    a(f'v_lshlrev_b32 v{R0}, 5, {vr(G_W)}')
    a(f'v_lshl_add_u32 v{R0}, {vr(G_G)}, 2, v{R0}')
    a(f'v_add_u32 v{R0}, s12, v{R0}')
    a(f'v_add_u32 v13, s13, {vr(G_I)}')
    a(f'v_lshlrev_b32 v14, 12, v13')
    a(f'v_lshl_add_u32 v14, v{R0}, 1, v14')
    a(f'v_add_u32 v15, 65536, v14')
    a(f'v_add_u32 v244, 65536, v15')
    a(f'v_lshlrev_b32 v13, 1, v13')
    a(f'v_lshlrev_b32 v245, 2, v{R0}')
    ex = []
    for mt in range(2):
        ex.append(lambda mt=mt: a(f'global_load_dwordx4 {vr(GV+4*mt,4)}, v245, s[20:21] offset:{mt*64}'))
    for nt in range(3):
        ex.append(lambda nt=nt: a(f'global_load_ushort v{DS+nt}, v13, s[10:11] offset:{32*nt}'))
    for nt in range(3):
        va = (14, 15, 244)[nt]
        for mt in range(2):
            ex.append(lambda nt=nt, mt=mt, va=va: a(f'global_load_dwordx2 {vr(YV+4*nt+2*mt,2)}, v{va}, s[22:23] offset:{mt*32}'))
            ex.append(lambda nt=nt, mt=mt, va=va: a(f'global_load_dwordx2 {vr(UV+4*nt+2*mt,2)}, v{va}, s[24:25] offset:{mt*32}'))
    stamp(a, 2)
    gemm_tr_setup(a)
    a('s_waitcnt vmcnt(12)')
    a('s_barrier')
    stamp(a, 3)
    gemm_main(a, 16, extra=ex)
    stamp(a, 4)
    a('s_waitcnt vmcnt(0)')
    for nt in range(3):
        a(f'v_lshlrev_b32 v{DS+nt}, 16, v{DS+nt}')
    TT = G_ABUF
    for i in range(8):
        a(f'v_sub_f32 v{TT+8+i}, 1.0, v{GV+i}')
    for mt in range(2):
        for nt in range(3):
            for ii in range(4):
                b = G_ACC + 12*mt + 4*nt + ii
                u = TT + 2
                ureg = UV + 4*nt + 2*mt + (ii >> 1)
                yreg = YV + 4*nt + 2*mt + (ii >> 1)
                if ii & 1:
                    a(f'v_and_b32 v{u}, 0xffff0000, v{ureg}')
                    a(f'v_and_b32 v{TT+1}, 0xffff0000, v{yreg}')
                else:
                    a(f'v_lshlrev_b32 v{u}, 16, v{ureg}')
                    a(f'v_lshlrev_b32 v{TT+1}, 16, v{yreg}')
                a(f'v_fma_f32 v{u}, v{u}, v{DS+nt}, v{TT+1}')
                a(f'v_mul_f32 v{b}, v{TT+8+4*mt+ii}, v{b}')
                a(f'v_fma_f32 v{b}, v{GV+4*mt+ii}, v{u}, v{b}')
    gemm_store_tile(a, 18)
    if INSTR:
        a('s_waitcnt vmcnt(0)')
        stamp(a, 5)
        a('s_cmp_lt_u32 s2, 8')
        a('s_cbranch_scc0 K3_END')
        a('s_cmp_eq_u32 s89, 0')
        a('s_cbranch_scc0 K3_END')
        a('s_mov_b32 s74, s2')
        dump_stamps(a, 5, None, None)
    tl_end(a, 2)
    a.label('K3_END')
    a('s_endpgm')

def main(outpath):
    hdr = open('gated_mix__ssm_conv_s4d__grouped_kv_mqa__prompt.s.ref').read().split('\n')
    head = [l for l in hdr if l.startswith(';') and '@launch' not in l and 'Override launch' not in l and 'grid=ceil' not in l]
    out = '\n'.join(head) + '\n'
    out += f'; @launch kernel=prep_kernel grid=({K1_GRID},1,1) block=(256,1,1) lds={K1_LDS}\n'
    out += f'; @launch kernel=attn_kernel grid=({K2_GRID},1,1) block=({K2_THREADS},1,1) lds={K2_LDS}\n'
    out += f'; @launch kernel=outp_kernel grid=({K3_GRID},1,1) block=(256,1,1) lds={K3_LDS}\n'
    out += '.amdgcn_target "amdgcn-amd-amdhsa--gfx950"\n'
    a = Asm()
    gen_k1(a); gen_k2(a); gen_k3(a)
    out += a.text()
    out += kernel_desc('prep_kernel', 224)
    out += kernel_desc('attn_kernel', 160)
    out += kernel_desc('outp_kernel', 248)
    open(outpath, 'w').write(out)

if __name__ == '__main__':
    if len(sys.argv) > 2 and sys.argv[2] == 'instr': INSTR = True
    if len(sys.argv) > 2 and sys.argv[2] == 'tl': TL = True
    main(sys.argv[1] if len(sys.argv) > 1 else 'gated_mix__ssm_conv_s4d__grouped_kv_mqa__prompt.s')
```
